```python
import torch

def _softmax(x, axis=-1):
    return torch.softmax(x, dim=axis)
def _gelu(x):
    return torch.nn.functional.gelu(x, approximate="tanh")
def _silu(x):
    return torch.nn.functional.silu(x)
def _sigmoid(x):
    return torch.sigmoid(x)
def _layernorm(x, axis=-1, eps=1e-5):
    m = x.mean(dim=axis, keepdim=True)
    v = x.var(dim=axis, keepdim=True, unbiased=False)
    return (x - m) / torch.sqrt(v + eps)
def _scatter_add(tgt, idx, src, axis=0):
    return tgt.clone().index_add_(axis, idx, src)
def _segment_sum(src, seg, n):
    out = torch.zeros((n,) + src.shape[1:], dtype=src.dtype)
    return out.index_add_(0, seg, src)
def _pad(x, pw):
    flat = tuple(v for pair in reversed(pw) for v in pair)
    return torch.nn.functional.pad(x, flat)

kernel_name = 'standalone__mha_block__prompt'

def setup_inputs():

    _w = (lambda a: (lambda t: t.to(torch.bfloat16) if t.is_floating_point() else t)(torch.as_tensor(a)))
    B, S, D, H = 1, 2048, 1024, 32
    return {
        "x": _w((lambda *s: torch.randn(*s, dtype=torch.bfloat16) * 0.2)(B, S, D)),
        "wqkv": _w((lambda *s: torch.randn(*s, dtype=torch.bfloat16) * 0.2)(D, 3 * D)),
        "wo": _w((lambda *s: torch.randn(*s, dtype=torch.bfloat16) * 0.05)(D, D)),
    }

def reference(x, wqkv, wo):
    B, S, D = x.shape
    H = 32
    Dh = D // H
    qkv = (lambda x, *d: x.permute(*d))((x @ wqkv).reshape(B, S, 3, H, Dh), 2, 0, 3, 1, 4)
    q, k, v = qkv[0], qkv[1], qkv[2]
    scores = torch.einsum("bhqd,bhkd->bhqk", q, k) * (Dh ** -0.5)
    p = _softmax(scores, axis=-1)
    o = torch.einsum("bhqk,bhkd->bhqd", p, v)
    return (lambda x, *d: x.permute(*d))(o, 0, 2, 1, 3).reshape(B, S, D) @ wo
```

```python
import struct, sys

def f32hex(x):
    return "0x%08x" % struct.unpack("<I", struct.pack("<f", x))[0]

class A:
    def __init__(self):
        self.l = []
    def __call__(self, s):
        for line in s.strip("\n").split("\n"):
            self.l.append("  " + line.strip() if not line.strip().endswith(":") else line.strip())
    def text(self):
        return "\n".join(self.l) + "\n"

def vr(b, n=1):
    return f"v{b}" if n == 1 else f"v[{b}:{b+n-1}]"
def sr(b, n=1):
    return f"s{b}" if n == 1 else f"s[{b}:{b+n-1}]"

C_SCALE = 1.4426950408889634 / (32 ** 0.5)
WS_Q = 0
WS_KV = 4 << 20
WS_O = 12 << 20
WS_SIZE = 16 << 20

def decode_hp_tb(a, s_hp, s_tb, t0, t1):
    a(f"""
    s_and_b32 s{t0}, s2, 7
    s_lshr_b32 s{t1}, s2, 3
    s_lshr_b32 s{s_hp}, s{t0}, 1
    s_lshl_b32 s{s_hp}, s{s_hp}, 2
    s_and_b32 s{s_tb}, s{t1}, 3
    s_add_u32 s{s_hp}, s{s_hp}, s{s_tb}
    s_and_b32 s{s_tb}, s{t0}, 1
    s_lshl_b32 s{s_tb}, s{s_tb}, 3
    s_lshr_b32 s{t1}, s{t1}, 2
    s_add_u32 s{s_tb}, s{s_tb}, s{t1}
    """)

def kernel_header(a, name):
    a.l.append(f".globl {name}")
    a.l.append(".p2align 8")
    a.l.append(f".type {name},@function")
    a.l.append(f"{name}:")

def descriptor(name, vgpr, sgpr=96):
    acc = (vgpr + 3) // 4 * 4
    return f""".amdhsa_kernel {name}
  .amdhsa_next_free_vgpr {vgpr}
  .amdhsa_next_free_sgpr {sgpr}
  .amdhsa_accum_offset {acc}
  .amdhsa_group_segment_fixed_size 0
  .amdhsa_kernarg_size 48
  .amdhsa_user_sgpr_count 2
  .amdhsa_user_sgpr_kernarg_segment_ptr 1
  .amdhsa_system_sgpr_workgroup_id_x 1
.end_amdhsa_kernel
"""

K1_STAGE = 40960
def gen_k1(a):
    name = "k1_qkv_kernel"
    kernel_header(a, name)
    S_HP, S_TB, S_W = 10, 11, 12
    a(f"""
    s_cmp_ge_u32 s2, 256
    s_cbranch_scc1 K1_END
    s_load_dwordx4 s[4:7], s[0:1], 0
    s_load_dwordx2 s[8:9], s[0:1], 40
    v_lshrrev_b32 v1, 6, v0
    v_and_b32 v0, 63, v0
    """)
    decode_hp_tb(a, S_HP, S_TB, 13, 14)
    a(f"""
    v_readfirstlane_b32 s{S_W}, v1
    s_waitcnt lgkmcnt(0)
    s_cmp_ge_u32 s{S_W}, 4
    s_cbranch_scc1 K1_LOADER
    """)
    XA = [4, 5, 6, 7]; WA = 8
    setA = dict(x0=16, x1=20, wq=24, wk=28, wv=32)
    setB = dict(x0=36, x1=40, wq=44, wk=48, wv=52)
    ACC = 64
    a(f"""
    s_and_b32 s13, s{S_W}, 1
    s_lshr_b32 s14, s{S_W}, 1
    v_and_b32 v1, 31, v0
    v_lshrrev_b32 v2, 5, v0            ; h
    v_lshrrev_b32 v3, 1, v1
    v_and_b32 v3, 7, v3
    v_xor_b32 v3, v3, v2               ; t = h ^ swz
    s_lshl_b32 s15, s14, 6
    v_add_u32 v1, s15, v1              ; row
    v_lshlrev_b32 v1, 7, v1            ; row*128
    """)
    for j in range(4):
        a(f"""
        v_xor_b32 v9, {2*j}, v3
        v_lshlrev_b32 v9, 4, v9
        v_add_u32 v{XA[j]}, v1, v9
        """)
    a(f"""
    v_lshrrev_b32 v1, 2, v0
    v_and_b32 v1, 3, v1                ; r
    v_lshlrev_b32 v3, 3, v2            ; 8h
    v_add_u32 v3, v3, v1
    v_lshlrev_b32 v3, 7, v3            ; (8h+r)*128
    v_lshrrev_b32 v9, 1, v1            ; r>>1
    v_xor_b32 v9, s13, v9
    v_lshlrev_b32 v9, 6, v9
    v_add_u32 v3, v3, v9
    v_lshrrev_b32 v9, 4, v0
    v_and_b32 v9, 1, v9
    v_lshlrev_b32 v9, 5, v9
    v_add_u32 v3, v3, v9
    v_and_b32 v9, 3, v0
    v_lshlrev_b32 v9, 3, v9
    v_add_u32 v3, v3, v9
    v_add_u32 v{WA}, 16384, v3
    """)
    for r in range(ACC, ACC + 96):
        a(f"v_mov_b32 v{r}, 0")
    for r in range(36, 56):
        a(f"v_mov_b32 v{r}, 0")
    def reads(st, j):
        a(f"""
        ds_read_b128 {vr(st['x0'],4)}, v{XA[j]}
        ds_read_b128 {vr(st['x1'],4)}, v{XA[j]} offset:4096
        """)
        for si, nm in enumerate(("wq", "wk", "wv")):
            for e in range(2):
                a(f"ds_read_b64_tr_b16 {vr(st[nm]+2*e,2)}, v{WA} offset:{si*8192 + j*2048 + e*512}")
    def mfmas(st):
        for tt in range(2):
            x = vr(st['x0' if tt == 0 else 'x1'], 4)
            q = vr(ACC + 16*tt, 16); k = vr(ACC + 32 + 16*tt, 16); v = vr(ACC + 64 + 16*tt, 16)
            a(f"v_mfma_f32_32x32x16_bf16 {q}, {vr(st['wq'],4)}, {x}, {q}")
            a(f"v_mfma_f32_32x32x16_bf16 {k}, {vr(st['wk'],4)}, {x}, {k}")
            a(f"v_mfma_f32_32x32x16_bf16 {v}, {x}, {vr(st['wv'],4)}, {v}")
    a(f"""
    s_mov_b32 s16, 0
    s_mov_b32 s17, 0
    K1_LOOP:
    s_barrier
    """)
    reads(setA, 0); mfmas(setB)
    reads(setB, 1); a("s_waitcnt lgkmcnt(8)"); mfmas(setA)
    reads(setA, 2); a("s_waitcnt lgkmcnt(8)"); mfmas(setB)
    reads(setB, 3); a("s_waitcnt lgkmcnt(8)"); mfmas(setA)
    a(f"""
    s_add_u32 s17, s17, 1
    s_cmp_eq_u32 s17, 3
    s_cselect_b32 s17, 0, s17
    s_mov_b32 s18, {K1_STAGE}
    s_cselect_b32 s18, {(-2*K1_STAGE) & 0xffffffff}, s18
    s_waitcnt lgkmcnt(0)
    """)
    for r in XA + [WA]:
        a(f"v_add_u32 v{r}, s18, v{r}")
    a(f"""
    s_add_u32 s16, s16, 1
    s_cmp_lt_u32 s16, 16
    s_cbranch_scc1 K1_LOOP
    """)
    mfmas(setB)
    a(f"""
    s_mov_b32 s20, s8
    s_and_b32 s21, s9, 0xffff
    s_mov_b32 s22, {WS_SIZE}
    s_mov_b32 s23, 0x20000
    s_lshl_b32 s15, s{S_HP}, 1
    s_add_u32 s15, s15, s13
    s_lshl_b32 s16, s{S_TB}, 2
    s_lshl_b32 s17, s14, 1
    s_add_u32 s16, s16, s17
    s_lshl_b32 s24, s15, 17
    s_lshl_b32 s25, s16, 11
    s_add_u32 s24, s24, s25          ; Q soffset
    s_lshl_b32 s25, s15, 18
    s_lshl_b32 s26, s16, 12
    s_add_u32 s25, s25, s26
    s_add_u32 s25, s25, {WS_KV}
    s_add_u32 s26, s25, 4096         ; tt=1
    v_lshlrev_b32 v2, 4, v0
    s_mov_b32 s27, {f32hex(C_SCALE)}
    s_nop 7
    """)
    for r in range(ACC, ACC + 32):
        a(f"v_mul_f32 v{r}, s27, v{r}")
    PK = 16
    def cvt(dst, src, n):
        for i in range(n):
            a(f"v_cvt_pk_bf16_f32 v{dst+i}, v{src+2*i}, v{src+2*i+1}")
    cvt(16, ACC, 16)
    for i in range(4):
        a(f"buffer_store_dwordx4 {vr(16+4*i,4)}, v2, s[20:23], s24 offen offset:{1024*i}")
    cvt(32, ACC + 32, 8)
    cvt(40, ACC + 64, 8)
    for i in range(4):
        a(f"buffer_store_dwordx4 {vr(32+4*i,4)}, v2, s[20:23], s25 offen offset:{1024*i}")
    cvt(48, ACC + 48, 8)
    cvt(56, ACC + 80, 8)
    for i in range(4):
        a(f"buffer_store_dwordx4 {vr(48+4*i,4)}, v2, s[20:23], s26 offen offset:{1024*i}")
    a("s_endpgm")
    a("K1_LOADER:")
    a(f"""
    s_sub_u32 s13, s{S_W}, 4         ; q
    s_lshl_b32 s14, s{S_TB}, 18
    s_add_u32 s20, s4, s14
    s_addc_u32 s21, s5, 0
    s_and_b32 s21, s21, 0xffff
    s_mov_b32 s22, 262144
    s_mov_b32 s23, 0x20000
    s_lshl_b32 s14, s{S_HP}, 7
    s_add_u32 s24, s6, s14
    s_addc_u32 s25, s7, 0
    s_and_b32 s25, s25, 0xffff
    s_sub_u32 s26, {1024*6144}, s14
    s_mov_b32 s27, 0x20000
    v_lshrrev_b32 v1, 3, v0          ; l>>3
    v_and_b32 v2, 7, v0
    v_lshrrev_b32 v3, 4, v0
    v_xor_b32 v2, v2, v3
    s_lshl_b32 s14, s13, 5           ; 32q
    v_add_u32 v3, s14, v1
    v_lshlrev_b32 v3, 11, v3
    v_lshlrev_b32 v9, 4, v2
    v_add_u32 v4, v3, v9
    v_xor_b32 v9, 64, v9
    v_add_u32 v5, v3, v9
    v_add_u32 v5, 16384, v5
    v_add_u32 v6, 32768, v4
    v_add_u32 v7, 32768, v5
    v_lshrrev_b32 v2, 2, v0
    v_lshrrev_b32 v3, 4, v0
    v_xor_b32 v2, v2, v3
    v_and_b32 v2, 1, v2              ; hh
    v_lshlrev_b32 v2, 6, v2
    v_and_b32 v3, 3, v0
    v_lshlrev_b32 v3, 4, v3
    v_add_u32 v2, v2, v3             ; hh*64 + (l&3)*16
    v_mul_u32_u24 v3, 6144, v1       ; (l>>3)*6144
    v_add_u32 v2, v2, v3
    s_mul_i32 s14, s13, 6
    """)
    for n in range(6):
        a(f"""
        s_add_u32 s15, s14, {n}
        s_lshr_b32 s16, s15, 3
        s_and_b32 s15, s15, 7
        s_mul_i32 s15, s15, {8*6144}
        s_lshl_b32 s16, s16, 11
        s_add_u32 s15, s15, s16
        v_add_u32 v{10+n}, s15, v2
        """)
    a(f"""
    s_lshl_b32 s28, s13, 12
    s_mul_i32 s29, s13, 6144
    s_add_u32 s29, s29, 16384
    s_mov_b32 s30, 0                 ; x soffset
    s_mov_b32 s31, 0                 ; W soffset
    s_mov_b32 s32, 0
    """)
    def issue():
        a("s_add_u32 m0, s32, s28\ns_nop 0")
        for n in range(4):
            a(f"buffer_load_dwordx4 v{4+n}, s[20:23], s30 offen lds")
            if n < 3: a("s_add_u32 m0, m0, 1024\ns_nop 0")
        a("s_add_u32 m0, s32, s29\ns_nop 0")
        for n in range(6):
            a(f"buffer_load_dwordx4 v{10+n}, s[24:27], s31 offen lds")
            if n < 5: a("s_add_u32 m0, m0, 1024\ns_nop 0")
        a(f"""
        s_add_u32 s30, s30, 128
        s_add_u32 s31, s31, {64*6144}
        s_add_u32 s32, s32, {K1_STAGE}
        s_cmp_eq_u32 s32, {3*K1_STAGE}
        s_cselect_b32 s32, 0, s32
        """)
    a("s_nop 0")
    issue(); issue()
    a(f"""
    s_mov_b32 s33, 0
    K1_LLOOP:
    s_cmp_lt_u32 s33, 15
    s_cbranch_scc1 K1_LW
    s_waitcnt vmcnt(0)
    K1_LW:
    s_waitcnt vmcnt(10)
    s_barrier
    s_cmp_ge_u32 s33, 14
    s_cbranch_scc1 K1_LSKIP
    """)
    issue()
    a(f"""
    K1_LSKIP:
    s_add_u32 s33, s33, 1
    s_cmp_lt_u32 s33, 16
    s_cbranch_scc1 K1_LLOOP
    K1_END:
    s_endpgm
    """)
    return name, 160

def gen_k2(a):
    name = "k2_attn_kernel"
    kernel_header(a, name)
    S_HP, S_TB, S_W = 10, 11, 12
    Q = 4
    CM = 16
    SA, SB = 32, 48
    P = 64
    KF = 72
    VF = 80
    O = 96
    L = 88
    ONES = 92
    VCUR, VNXT, VL16 = 1, 2, 3
    a(f"""
    s_cmp_ge_u32 s2, 256
    s_cbranch_scc1 K2_END
    s_load_dwordx2 s[8:9], s[0:1], 40
    v_lshrrev_b32 v1, 6, v0
    v_and_b32 v0, 63, v0
    """)
    decode_hp_tb(a, S_HP, S_TB, 13, 14)
    a(f"""
    v_readfirstlane_b32 s{S_W}, v1
    v_lshlrev_b32 v{VL16}, 4, v0
    s_waitcnt lgkmcnt(0)
    s_mov_b32 s20, s8
    s_and_b32 s21, s9, 0xffff
    s_mov_b32 s22, {WS_SIZE}
    s_mov_b32 s23, 0x20000
    s_and_b32 s13, s{S_W}, 1
    s_lshr_b32 s14, s{S_W}, 1
    s_and_b32 s14, s14, 1
    s_lshl_b32 s14, s14, 1
    s_lshr_b32 s15, s{S_W}, 2
    s_add_u32 s14, s14, s15          ; tile
    s_lshl_b32 s15, s{S_HP}, 1
    s_add_u32 s15, s15, s13          ; head   (s15)
    s_lshl_b32 s16, s{S_TB}, 2
    s_add_u32 s16, s16, s14          ; T      (s16)
    s_lshl_b32 s17, s15, 17
    s_lshl_b32 s18, s16, 11
    s_add_u32 s17, s17, s18
    buffer_load_dwordx4 {vr(Q,4)}, v{VL16}, s[20:23], s17 offen
    buffer_load_dwordx4 {vr(Q+4,4)}, v{VL16}, s[20:23], s17 offen offset:1024
    s_lshr_b32 s17, s{S_W}, 2
    s_lshl_b32 s18, s{S_HP}, 1
    s_add_u32 s18, s18, s17
    s_lshl_b32 s18, s18, 18
    s_and_b32 s19, s{S_W}, 3
    s_lshl_b32 s19, s19, 12
    s_add_u32 s24, s18, s19
    s_add_u32 s24, s24, {WS_KV}
    s_lshl_b32 s17, s17, 14
    s_add_u32 s25, s17, s19
    s_mov_b32 s26, s{S_TB}
    s_mov_b32 s27, 0
    """)
    def issue():
        a(f"""
        s_lshl_b32 s28, s26, 14
        s_add_u32 s28, s28, s24
        s_add_u32 m0, s27, s25
        s_add_u32 s26, s26, 1
        s_and_b32 s26, s26, 15
        buffer_load_dwordx4 v{VL16}, s[20:23], s28 offen lds
        buffer_load_dwordx4 v{VL16}, s[20:23], s28 offen offset:1024 lds
        buffer_load_dwordx4 v{VL16}, s[20:23], s28 offen offset:2048 lds
        buffer_load_dwordx4 v{VL16}, s[20:23], s28 offen offset:3072 lds
        s_add_u32 s27, s27, 32768
        s_and_b32 s27, s27, 0x1ffff
        """)
    issue(); issue(); issue()
    a(f"""
    s_lshl_b32 s17, s13, 14
    v_add_u32 v{VCUR}, s17, v{VL16}
    v_add_u32 v{VNXT}, 32768, v{VCUR}
    v_lshrrev_b32 v{ONES}, 2, v0
    v_lshrrev_b32 v{ONES+1}, 4, v0
    v_xor_b32 v{ONES}, v{ONES}, v{ONES+1}
    v_and_b32 v{ONES}, 1, v{ONES}
    v_cmp_eq_u32 vcc, 0, v{ONES}
    v_mov_b32 v{ONES+1}, 0x3f803f80
    s_nop 0
    v_cndmask_b32 v{ONES}, 0, v{ONES+1}, vcc
    s_nop 0
    v_mov_b32 v{ONES+1}, v{ONES}
    v_mov_b32 v{ONES+2}, v{ONES}
    v_mov_b32 v{ONES+3}, v{ONES}
    """)
    for r in range(16): a(f"v_mov_b32 v{O+r}, 0")
    for r in range(4): a(f"v_mov_b32 v{L+r}, 0")
    a(f"""
    s_waitcnt vmcnt(8)
    s_barrier
    ds_read_b128 {vr(KF,4)}, v{VCUR}
    ds_read_b128 {vr(KF+4,4)}, v{VCUR} offset:1024
    s_waitcnt lgkmcnt(0)
    v_mfma_f32_32x32x16_bf16 {vr(SA,16)}, {vr(KF,4)}, {vr(Q,4)}, 0
    v_mfma_f32_32x32x16_bf16 {vr(SA,16)}, {vr(KF+4,4)}, {vr(Q+4,4)}, {vr(SA,16)}
    s_nop 15
    """)
    a(f"v_max3_f32 v{CM}, v{SA}, v{SA+1}, v{SA+2}")
    for i in range(3, 15, 2):
        a(f"v_max3_f32 v{CM}, v{CM}, v{SA+i}, v{SA+i+1}")
    a(f"""
    v_max_f32 v{CM}, v{CM}, v{SA+15}
    v_mov_b32 v{CM+1}, v{CM}
    s_nop 1
    v_permlane32_swap_b32 v{CM}, v{CM+1}
    s_nop 1
    v_max_f32 v{CM}, v{CM}, v{CM+1}
    v_sub_f32 v{CM}, 0, v{CM}
    """)
    for i in range(1, 16): a(f"v_mov_b32 v{CM+i}, v{CM}")
    a(f"""
    s_nop 1
    v_mfma_f32_32x32x16_bf16 {vr(SA,16)}, {vr(KF,4)}, {vr(Q,4)}, {vr(CM,16)}
    v_mfma_f32_32x32x16_bf16 {vr(SA,16)}, {vr(KF+4,4)}, {vr(Q+4,4)}, {vr(SA,16)}
    s_mov_b32 s30, 0
    s_nop 15
    K2_LOOP:
    """)
    def tile(u):
        sa, sb = (SA, SB) if u % 2 == 0 else (SB, SA)
        if u == 3:
            a(f"""
            s_cmp_lt_u32 s30, 14
            s_cbranch_scc1 K2_W4
            s_waitcnt vmcnt(0)
            K2_W4:
            s_waitcnt vmcnt(4)
            s_barrier
            s_cmp_ge_u32 s30, 13
            s_cbranch_scc1 K2_NOISSUE
            """)
            issue()
            a("K2_NOISSUE:")
            a(f"""
            ds_read_b128 {vr(KF,4)}, v{VNXT}
            ds_read_b128 {vr(KF+4,4)}, v{VNXT} offset:1024
            """)
        else:
            a(f"""
            ds_read_b128 {vr(KF,4)}, v{VCUR} offset:{(u+1)*4096}
            ds_read_b128 {vr(KF+4,4)}, v{VCUR} offset:{(u+1)*4096+1024}
            """)
        a(f"""
        ds_read_b128 {vr(VF,4)}, v{VCUR} offset:{u*4096+2048}
        ds_read_b128 {vr(VF+4,4)}, v{VCUR} offset:{u*4096+3072}
        """)
        for i in range(8): a(f"v_exp_f32 v{sa+i}, v{sa+i}")
        a("s_waitcnt lgkmcnt(2)")
        a(f"v_mfma_f32_32x32x16_bf16 {vr(sb,16)}, {vr(KF,4)}, {vr(Q,4)}, {vr(CM,16)}")
        for i in range(4): a(f"v_cvt_pk_bf16_f32 v{P+i}, v{sa+2*i}, v{sa+2*i+1}")
        for i in range(8, 12): a(f"v_exp_f32 v{sa+i}, v{sa+i}")
        a(f"v_mfma_f32_32x32x16_bf16 {vr(sb,16)}, {vr(KF+4,4)}, {vr(Q+4,4)}, {vr(sb,16)}")
        for i in range(12, 16): a(f"v_exp_f32 v{sa+i}, v{sa+i}")
        a("s_waitcnt lgkmcnt(0)")
        a(f"v_mfma_f32_32x32x16_bf16 {vr(O,16)}, {vr(VF,4)}, {vr(P,4)}, {vr(O,16)}")
        for i in range(4, 8): a(f"v_cvt_pk_bf16_f32 v{P+i}, v{sa+2*i}, v{sa+2*i+1}")
        a(f"v_mfma_f32_16x16x32_bf16 {vr(L,4)}, {vr(ONES,4)}, {vr(P,4)}, {vr(L,4)}")
        a("s_nop 0")
        a(f"v_mfma_f32_32x32x16_bf16 {vr(O,16)}, {vr(VF+4,4)}, {vr(P+4,4)}, {vr(O,16)}")
        a(f"v_mfma_f32_16x16x32_bf16 {vr(L,4)}, {vr(ONES,4)}, {vr(P+4,4)}, {vr(L,4)}")
    for u in range(4): tile(u)
    a(f"""
    v_mov_b32 v{VCUR}, v{VNXT}
    v_add_u32 v{VNXT}, 32768, v{VNXT}
    v_and_b32 v{VNXT}, 0x1ffff, v{VNXT}
    s_add_u32 s30, s30, 1
    s_cmp_lt_u32 s30, 16
    s_cbranch_scc1 K2_LOOP
    s_nop 15
    """)
    a(f"""
    v_rcp_f32 v{L+1}, v{L}
    s_nop 0
    """)
    for r in range(16): a(f"v_mul_f32 v{O+r}, v{O+r}, v{L+1}")
    for i in range(8): a(f"v_cvt_pk_bf16_f32 v{P+i}, v{O+2*i}, v{O+2*i+1}")
    a(f"""
    s_lshl_b32 s17, s16, 16
    s_lshl_b32 s18, s15, 11
    s_add_u32 s17, s17, s18
    s_add_u32 s17, s17, {WS_O}
    buffer_store_dwordx4 {vr(P,4)}, v{VL16}, s[20:23], s17 offen
    buffer_store_dwordx4 {vr(P+4,4)}, v{VL16}, s[20:23], s17 offen offset:1024
    K2_END:
    s_endpgm
    """)
    return name, 112

def gen_k3(a):
    name = "k3_out_kernel"
    kernel_header(a, name)
    S_W = 12
    ACC = 16
    OB = [32, 96]
    WF = [160, 164]
    VL16, VT = 3, 4
    a(f"""
    s_cmp_ge_u32 s2, 256
    s_cbranch_scc1 K3_END
    s_load_dwordx4 s[4:7], s[0:1], 16
    s_load_dwordx2 s[8:9], s[0:1], 40
    v_lshrrev_b32 v1, 6, v0
    v_and_b32 v0, 63, v0
    """)
    decode_hp_tb(a, 11, 10, 13, 14)
    a(f"""
    v_readfirstlane_b32 s{S_W}, v1
    v_lshlrev_b32 v{VL16}, 4, v0
    s_waitcnt lgkmcnt(0)
    s_mov_b32 s20, s8
    s_and_b32 s21, s9, 0xffff
    s_mov_b32 s22, {WS_SIZE}
    s_mov_b32 s23, 0x20000
    s_lshl_b32 s14, s10, 7
    s_add_u32 s24, s4, s14
    s_addc_u32 s25, s5, 0
    s_and_b32 s25, s25, 0xffff
    s_sub_u32 s26, {1024*2048}, s14
    s_mov_b32 s27, 0x20000
    s_and_b32 s13, s{S_W}, 3
    s_lshr_b32 s14, s{S_W}, 2
    v_lshrrev_b32 v1, 3, v0
    v_lshrrev_b32 v2, 2, v0
    v_lshrrev_b32 v5, 4, v0
    v_xor_b32 v2, v2, v5
    v_and_b32 v2, 1, v2
    v_lshlrev_b32 v2, 6, v2
    v_and_b32 v5, 3, v0
    v_lshlrev_b32 v5, 4, v5
    v_add_u32 v2, v2, v5
    s_lshl_b32 s15, s{S_W}, 5
    v_add_u32 v1, s15, v1
    v_lshlrev_b32 v1, 11, v1
    v_add_u32 v5, v1, v2              ; n=0
    v_add_u32 v6, 16384, v5
    v_add_u32 v7, 32768, v5
    v_add_u32 v8, 49152, v5
    s_lshl_b32 s28, s{S_W}, 12
    s_lshl_b32 s16, s11, 2
    s_add_u32 s16, s16, s13
    s_lshl_b32 s29, s16, 16
    s_add_u32 s29, s29, {WS_O}
    """)
    def wo_issue(q):
        a(f"s_add_u32 m0, s28, {q*32768}")
        a(f"s_mov_b32 s30, {q*256*2048}")
        for n in range(4):
            a(f"buffer_load_dwordx4 v{5+n}, s[24:27], s30 offen lds")
            if n < 3: a("s_add_u32 m0, m0, 1024\ns_nop 0")
    def o_issue(b):
        for i in range(16):
            if i % 4 == 0: a(f"s_add_u32 s31, s29, {b*16384 + i*1024}")
            a(f"buffer_load_dwordx4 {vr(OB[b%2]+4*i,4)}, v{VL16}, s[20:23], s31 offen offset:{(i%4)*1024}")
    wo_issue(0); o_issue(0); wo_issue(1); o_issue(1); wo_issue(2); wo_issue(3)
    a(f"""
    v_lshrrev_b32 v1, 2, v0
    v_and_b32 v1, 3, v1              ; r
    v_lshrrev_b32 v2, 5, v0          ; h
    v_lshlrev_b32 v2, 2, v2
    v_add_u32 v2, v2, v1
    v_lshlrev_b32 v2, 7, v2          ; (4h+r)*128
    v_lshrrev_b32 v1, 1, v1
    v_xor_b32 v1, s14, v1
    v_lshlrev_b32 v1, 6, v1
    v_add_u32 v2, v2, v1
    v_lshrrev_b32 v1, 4, v0
    v_and_b32 v1, 1, v1
    v_lshlrev_b32 v1, 5, v1
    v_add_u32 v2, v2, v1
    v_and_b32 v1, 3, v0
    v_lshlrev_b32 v1, 3, v1
    v_add_u32 v{VT}, v2, v1
    """)
    for r in range(16): a(f"v_mov_b32 v{ACC+r}, 0")
    waits = [28, 8+16-16, None, None]
    for b in range(4):
        if b == 0: a("s_waitcnt vmcnt(28)")
        elif b == 1: a("s_waitcnt vmcnt(24)")
        elif b == 2: a("s_waitcnt vmcnt(16)")
        else: a("s_waitcnt vmcnt(0)")
        a("s_barrier")
        for j in range(16):
            wf = WF[j % 2]
            a(f"ds_read_b64_tr_b16 {vr(wf,2)}, v{VT} offset:{j*2048}")
            a(f"ds_read_b64_tr_b16 {vr(wf+2,2)}, v{VT} offset:{j*2048+1024}")
            if j > 0:
                a("s_waitcnt lgkmcnt(2)")
                a(f"v_mfma_f32_32x32x16_bf16 {vr(ACC,16)}, {vr(WF[(j-1)%2],4)}, {vr(OB[b%2]+4*(j-1),4)}, {vr(ACC,16)}")
        a("s_waitcnt lgkmcnt(0)")
        a(f"v_mfma_f32_32x32x16_bf16 {vr(ACC,16)}, {vr(WF[15%2],4)}, {vr(OB[b%2]+4*15,4)}, {vr(ACC,16)}")
        if b < 2: o_issue(b + 2)
        if b < 3: a(f"v_add_u32 v{VT}, 32768, v{VT}")
    a(f"""
    s_mov_b32 s20, s6
    s_and_b32 s21, s7, 0xffff
    s_mov_b32 s22, {2048*1024*2}
    v_and_b32 v1, 31, v0
    s_lshl_b32 s16, s16, 5
    v_add_u32 v1, s16, v1
    v_lshlrev_b32 v1, 11, v1
    v_lshrrev_b32 v2, 5, v0
    v_lshlrev_b32 v2, 4, v2
    v_add_u32 v1, v1, v2
    s_lshl_b32 s17, s10, 7
    s_lshl_b32 s18, s14, 6
    s_add_u32 s17, s17, s18
    v_add_u32 v1, s17, v1
    s_nop 7
    """)
    for i in range(8): a(f"v_cvt_pk_bf16_f32 v{32+i}, v{ACC+2*i}, v{ACC+2*i+1}")
    a(f"""
    s_nop 1
    v_permlane32_swap_b32 v32, v34
    v_permlane32_swap_b32 v33, v35
    v_permlane32_swap_b32 v36, v38
    v_permlane32_swap_b32 v37, v39
    s_nop 1
    buffer_store_dwordx4 v[32:35], v1, s[20:23], 0 offen
    buffer_store_dwordx4 v[36:39], v1, s[20:23], 0 offen offset:32
    K3_END:
    s_endpgm
    """)
    return name, 168

def main():
    hdr = """; MHA block: QKV GEMM -> attention -> out projection
; @launch kernel=k1_qkv_kernel grid=(256,1,1) block=(512,1,1) lds=122880
; @launch kernel=k2_attn_kernel grid=(256,1,1) block=(512,1,1) lds=131072
; @launch kernel=k3_out_kernel grid=(256,1,1) block=(512,1,1) lds=131072
.amdgcn_target "amdgcn-amd-amdhsa--gfx950"
.text
"""
    a = A()
    ks = [gen_k1(a), gen_k2(a), gen_k3(a)]
    out = hdr + a.text() + '.section .rodata,"a"\n'
    for n, v in ks:
        out += ".p2align 6\n" + descriptor(n, v)
    open(sys.argv[1] if len(sys.argv) > 1 else "standalone__mha_block__prompt.s", "w").write(out)

main()
```

```python
import struct, sys

def f32hex(x):
    return "0x%08x" % struct.unpack("<I", struct.pack("<f", x))[0]

class A:
    def __init__(self):
        self.l = []
    def __call__(self, s):
        for line in s.strip("\n").split("\n"):
            t = line.strip()
            if not t: continue
            self.l.append(t if t.endswith(":") else "  " + t)
    def text(self):
        return "\n".join(self.l) + "\n"

def vr(b, n=1):
    return f"v{b}" if n == 1 else f"v[{b}:{b+n-1}]"
def sr(b, n=1):
    return f"s{b}" if n == 1 else f"s[{b}:{b+n-1}]"

ARGS = sys.argv[1:]
OPT = set(x[6:] for x in ARGS if x.startswith("--opt="))
STAMP = "--stamp" in ARGS
def optval(name, default):
    for x in ARGS:
        if x.startswith(f"--{name}="): return x[len(name)+3:]
    return default

C_SCALE = 1.4426950408889634 / (32 ** 0.5)
WS_KV = 0
WS_O = 8 << 20
WS_F1 = 12 << 20
WS_F2 = (12 << 20) + 4096
WS_SIZE = 16 << 20
STAMP_OFF = 32 << 20
SPIN_MAX = 1 << 17

S_X, S_WQ, S_WO, S_OUT, S_DBG, S_WS = 4, 6, 8, 10, 12, 14
S_HP, S_TB, S_W, S_HH = 16, 17, 18, 19
SRD_WS, SRD_X, SRD_W, SRD_OUT, SRD_WO, SRD_D = 20, 24, 28, 32, 36, 40
S_TH, S_TB3, S_CG = 44, 45, 46
T0, T1, T2, T3, T4, T5 = 47, 48, 49, 50, 51, 52
S_C, S_IDX, S_STEP, S_BASE, S_SOFF, S_WL, S_MASK = 56, 57, 58, 59, 60, 61, 62
S_SLOT, S_XO, S_WOF, S_XL, S_WL2, S_B = 56, 57, 58, 59, 60, 61
S_NON = 64
S_SPIN = 66
S_EX = 68
ST0 = 70
NSTAMP = 12

stamp_n = [0]
def stamp(a, idx):
    if not STAMP: return
    a(f"s_memtime s[98:99]\ns_waitcnt lgkmcnt(0)\ns_mov_b32 s{ST0+idx}, s98")

K1_STAGE = 40960

def gen(a):
    name = "standalone__mha_block__prompt_kernel"
    a.l.append(f".globl {name}")
    a.l.append(".p2align 8")
    a.l.append(f".type {name},@function")
    a.l.append(f"{name}:")
    a(f"""
    s_cmp_ge_u32 s2, 256
    s_cbranch_scc1 K_END
    s_load_dwordx8 s[4:11], s[0:1], 0
    s_load_dwordx4 s[12:15], s[0:1], 32
    """)
    if STAMP:
        a("s_memrealtime s[96:97]")
        for i in range(NSTAMP): a(f"s_mov_b32 s{ST0+i}, 0")
        a(f"s_memtime s[98:99]")
    a(f"""
    v_lshrrev_b32 v1, 6, v0
    v_and_b32 v0, 63, v0
    s_and_b32 s{T0}, s2, 7            ; xcd
    s_lshr_b32 s{T1}, s2, 3           ; loc
    v_readfirstlane_b32 s{S_W}, v1
    s_lshr_b32 s{S_HP}, s{T0}, 1
    s_lshl_b32 s{S_HP}, s{S_HP}, 2
    s_and_b32 s{T2}, s{T1}, 3
    s_add_u32 s{S_HP}, s{S_HP}, s{T2}
    s_and_b32 s{S_TB}, s{T0}, 1
    s_lshl_b32 s{S_TB}, s{S_TB}, 3
    s_lshr_b32 s{T2}, s{T1}, 2
    s_add_u32 s{S_TB}, s{S_TB}, s{T2}
    s_lshl_b32 s{S_TB3}, s{T0}, 1
    s_and_b32 s{T2}, s{T1}, 1
    s_add_u32 s{S_TB3}, s{S_TB3}, s{T2}
    s_lshr_b32 s{S_CG}, s{T1}, 1
    s_waitcnt lgkmcnt(0)
    """)
    if STAMP: a(f"s_mov_b32 s{ST0}, s98")
    a(f"""
    s_cmp_ge_u32 s{S_W}, 4
    s_cbranch_scc1 P1_LOADER
    """)
    XA = [4, 5, 6, 7]; WA = 8
    setA = dict(x0=16, x1=20, wq=24, wk=28, wv=32)
    setB = dict(x0=36, x1=40, wq=44, wk=48, wv=52)
    ACC = 64
    a(f"""
    s_setprio 1
    s_and_b32 s{S_HH}, s{S_W}, 1
    s_lshr_b32 s{S_TH}, s{S_W}, 1
    v_and_b32 v1, 31, v0
    v_lshrrev_b32 v2, 5, v0            ; h
    v_lshrrev_b32 v3, 1, v1
    v_and_b32 v3, 7, v3                ; (row>>1)&7
    v_xor_b32 v3, v3, v2               ; t = h ^ swz
    s_lshl_b32 s{T0}, s{S_TH}, 6
    v_add_u32 v1, s{T0}, v1            ; row
    v_lshlrev_b32 v1, 7, v1            ; row*128
    """)
    for j in range(4):
        a(f"""
        v_xor_b32 v9, {2*j}, v3
        v_lshlrev_b32 v9, 4, v9
        v_add_u32 v{XA[j]}, v1, v9
        """)
    a(f"""
    v_lshrrev_b32 v1, 2, v0
    v_and_b32 v1, 3, v1                ; r
    v_lshlrev_b32 v3, 3, v2            ; 8h
    v_add_u32 v3, v3, v1
    v_lshlrev_b32 v3, 7, v3            ; (8h+r)*128
    v_lshrrev_b32 v9, 1, v1            ; r>>1
    v_xor_b32 v9, s{S_HH}, v9
    v_lshlrev_b32 v9, 6, v9
    v_add_u32 v3, v3, v9
    v_lshrrev_b32 v9, 4, v0
    v_and_b32 v9, 1, v9
    v_lshlrev_b32 v9, 5, v9
    v_add_u32 v3, v3, v9
    v_and_b32 v9, 3, v0
    v_lshlrev_b32 v9, 3, v9
    v_add_u32 v3, v3, v9
    v_add_u32 v{WA}, 16384, v3
    """)
    for r in range(ACC, ACC + 96):
        a(f"v_mov_b32 v{r}, 0")
    RD = ["x0", "wq0", "wq1", "wk0", "wk1", "wv0", "wv1", "x1"]
    def rd(st, j, nm):
        if nm == "x0": a(f"ds_read_b128 {vr(st['x0'],4)}, v{XA[j]}")
        elif nm == "x1": a(f"ds_read_b128 {vr(st['x1'],4)}, v{XA[j]} offset:4096")
        else:
            si = {"q": 0, "k": 1, "v": 2}[nm[1]]; e = int(nm[2])
            a(f"ds_read_b64_tr_b16 {vr(st['w'+nm[1]]+2*e,2)}, v{WA} offset:{si*8192 + j*2048 + e*512}")
    def mf(st, i):
        tt = i // 3
        x = vr(st['x0' if tt == 0 else 'x1'], 4)
        k = i % 3
        d = vr(ACC + 32*k + 16*tt, 16)
        if k == 0: a(f"v_mfma_f32_32x32x16_bf16 {d}, {vr(st['wq'],4)}, {x}, {d}")
        elif k == 1: a(f"v_mfma_f32_32x32x16_bf16 {d}, {vr(st['wk'],4)}, {x}, {d}")
        else: a(f"v_mfma_f32_32x32x16_bf16 {d}, {x}, {vr(st['wv'],4)}, {d}")
    a(f"""
    s_mov_b32 s{T3}, 0
    s_mov_b32 s{T4}, 0
    s_barrier
    """)
    stamp(a, 1)
    for nm in RD: rd(setA, 0, nm)
    a("P1_LOOP:")
    for j in range(4):
        cur, nxt = (setA, setB) if j % 2 == 0 else (setB, setA)
        jn = (j + 1) % 4
        if j < 3:
            a("s_waitcnt lgkmcnt(5)"); mf(cur, 0); rd(nxt, jn, RD[0]); rd(nxt, jn, RD[1])
            a("s_waitcnt lgkmcnt(5)"); mf(cur, 1); rd(nxt, jn, RD[2]); rd(nxt, jn, RD[3])
            a("s_waitcnt lgkmcnt(5)"); mf(cur, 2); rd(nxt, jn, RD[4]); rd(nxt, jn, RD[5])
            a("s_waitcnt lgkmcnt(6)"); mf(cur, 3); rd(nxt, jn, RD[6]); rd(nxt, jn, RD[7])
            mf(cur, 4); mf(cur, 5)
        else:
            a("s_waitcnt lgkmcnt(5)"); mf(cur, 0)
            a(f"""
            s_add_u32 s{T4}, s{T4}, 1
            s_and_b32 s{T4}, s{T4}, 3
            s_mov_b32 s{T5}, {K1_STAGE}
            s_cselect_b32 s{T5}, s{T5}, {(-3*K1_STAGE) & 0xffffffff}
            s_waitcnt lgkmcnt(0)
            s_barrier
            """)
            mf(cur, 1)
            for r in XA + [WA]:
                a(f"v_add_u32 v{r}, s{T5}, v{r}")
            rd(nxt, jn, RD[0]); rd(nxt, jn, RD[1])
            mf(cur, 2); rd(nxt, jn, RD[2]); rd(nxt, jn, RD[3])
            mf(cur, 3); rd(nxt, jn, RD[4]); rd(nxt, jn, RD[5])
            mf(cur, 4); rd(nxt, jn, RD[6]); rd(nxt, jn, RD[7])
            mf(cur, 5)
            a(f"""
            s_add_u32 s{T3}, s{T3}, 1
            s_cmp_lt_u32 s{T3}, 16
            s_cbranch_scc1 P1_LOOP
            """)
    stamp(a, 2)
    a(f"""
    s_setprio 0
    s_waitcnt lgkmcnt(0)
    s_mov_b32 s{SRD_WS}, s{S_WS}
    s_and_b32 s{SRD_WS+1}, s{S_WS+1}, 0xffff
    s_mov_b32 s{SRD_WS+2}, {WS_SIZE}
    s_mov_b32 s{SRD_WS+3}, 0x20000
    s_lshl_b32 s{T0}, s{S_HP}, 1
    s_add_u32 s{T0}, s{T0}, s{S_HH}
    s_lshl_b32 s{T1}, s{S_TB}, 2
    s_lshl_b32 s{T2}, s{S_TH}, 1
    s_add_u32 s{T1}, s{T1}, s{T2}
    s_lshl_b32 s{T3}, s{T0}, 18
    s_lshl_b32 s{T4}, s{T1}, 12
    s_add_u32 s{T3}, s{T3}, s{T4}
    s_add_u32 s{T4}, s{T3}, 4096         ; tt=1
    v_lshlrev_b32 v3, 4, v0              ; lane*16
    s_lshl_b32 s{T0}, s{S_HH}, 14
    s_lshl_b32 s{T1}, s{S_TH}, 13
    s_add_u32 s{T0}, s{T0}, s{T1}
    v_add_u32 v2, s{T0}, v3
    s_nop 3
    """)
    def cvt(dst, src, n):
        for i in range(n):
            a(f"v_cvt_pk_bf16_f32 v{dst+i}, v{src+2*i}, v{src+2*i+1}")
    cvt(16, ACC + 32, 8)
    cvt(24, ACC + 64, 8)
    for i in range(4):
        a(f"buffer_store_dwordx4 {vr(16+4*i,4)}, v3, s[{SRD_WS}:{SRD_WS+3}], s{T3} offen offset:{1024*i} sc1")
    cvt(32, ACC + 48, 8)
    cvt(40, ACC + 80, 8)
    for i in range(4):
        a(f"buffer_store_dwordx4 {vr(32+4*i,4)}, v3, s[{SRD_WS}:{SRD_WS+3}], s{T4} offen offset:{1024*i} sc1")
    for i in range(8):
        a(f"ds_write_b128 v2, {vr(16+4*i,4)} offset:{1024*i}")
    a(f"s_mov_b32 s{T0}, {f32hex(C_SCALE)}")
    for r in range(ACC + 16, ACC + 32):
        a(f"v_mul_f32 v{r}, s{T0}, v{r}")
    cvt(48, ACC + 16, 8)
    QX = 98304
    a(f"""
    s_lshl_b32 s{T1}, s{S_W}, 11
    s_add_u32 s{T1}, s{T1}, {QX}
    v_add_u32 v2, s{T1}, v3
    """)
    for r in range(ACC, ACC + 16):
        a(f"v_mul_f32 v{r}, s{T0}, v{r}")
    a(f"""
    ds_write_b128 v2, {vr(48,4)}
    ds_write_b128 v2, {vr(52,4)} offset:1024
    """)
    cvt(4, ACC, 8)
    a("s_branch P2_START")
    a("P1_LOADER:")
    a(f"""
    s_sub_u32 s{T0}, s{S_W}, 4         ; q
    s_lshl_b32 s{T1}, s{S_TB}, 18
    s_add_u32 s{SRD_X}, s{S_X}, s{T1}
    s_addc_u32 s{SRD_X+1}, s{S_X+1}, 0
    s_and_b32 s{SRD_X+1}, s{SRD_X+1}, 0xffff
    s_mov_b32 s{SRD_X+2}, 262144
    s_mov_b32 s{SRD_X+3}, 0x20000
    v_lshrrev_b32 v1, 3, v0          ; l>>3
    v_and_b32 v2, 7, v0
    v_lshrrev_b32 v3, 4, v0
    v_xor_b32 v2, v2, v3
    s_lshl_b32 s{T1}, s{T0}, 5       ; 32q
    v_add_u32 v3, s{T1}, v1
    v_lshlrev_b32 v3, 11, v3
    v_lshlrev_b32 v9, 4, v2
    v_add_u32 v4, v3, v9
    v_xor_b32 v9, 64, v9
    v_add_u32 v5, v3, v9
    v_add_u32 v5, {16384-1024}, v5
    v_add_u32 v6, {32768-2048}, v4
    v_add_u32 v7, {32768-2048}, v5
    s_lshl_b32 s{S_XL}, s{T0}, 12
    s_mov_b32 s{S_XO}, 0
    s_mov_b32 s{S_SLOT}, 0
    """)
    def issue_x():
        a(f"s_add_u32 m0, s{S_SLOT}, s{S_XL}\ns_nop 0")
        for n in range(4):
            a(f"buffer_load_dwordx4 v{4+n}, s[{SRD_X}:{SRD_X+3}], s{S_XO} offen offset:{n*1024} lds")
    def issue_w():
        a(f"s_add_u32 m0, s{S_SLOT}, s{S_WL2}\ns_add_u32 s{S_XO}, s{S_XO}, 128")
        for n in range(4):
            a(f"buffer_load_dwordx4 v{10+n}, s[{SRD_W}:{SRD_W+3}], s{S_WOF} offen offset:{n*1024} lds")
        a(f"s_add_u32 m0, m0, 4096\ns_nop 0")
        for n in range(4, 6):
            a(f"buffer_load_dwordx4 v{10+n}, s[{SRD_W}:{SRD_W+3}], s{S_WOF} offen offset:{(n-4)*1024} lds")
        a(f"""
        s_add_u32 s{S_WOF}, s{S_WOF}, {64*6144}
        s_add_u32 s{S_SLOT}, s{S_SLOT}, {K1_STAGE}
        s_cmp_eq_u32 s{S_SLOT}, {4*K1_STAGE}
        s_cselect_b32 s{S_SLOT}, 0, s{S_SLOT}
        """)
    issue_x()
    a(f"""
    s_lshl_b32 s{T1}, s{S_HP}, 7
    s_add_u32 s{SRD_W}, s{S_WQ}, s{T1}
    s_addc_u32 s{SRD_W+1}, s{S_WQ+1}, 0
    s_and_b32 s{SRD_W+1}, s{SRD_W+1}, 0xffff
    s_sub_u32 s{SRD_W+2}, {1024*6144}, s{T1}
    s_mov_b32 s{SRD_W+3}, 0x20000
    v_lshrrev_b32 v2, 2, v0
    v_lshrrev_b32 v3, 4, v0
    v_xor_b32 v2, v2, v3
    v_and_b32 v2, 1, v2              ; hh
    v_lshlrev_b32 v2, 6, v2
    v_and_b32 v3, 3, v0
    v_lshlrev_b32 v3, 4, v3
    v_add_u32 v2, v2, v3             ; hh*64 + (l&3)*16
    v_mul_u32_u24 v3, 6144, v1       ; (l>>3)*6144
    v_add_u32 v2, v2, v3
    s_mul_i32 s{T1}, s{T0}, 6
    """)
    for n in range(6):
        a(f"""
        s_add_u32 s{T2}, s{T1}, {n}
        s_lshr_b32 s{T3}, s{T2}, 3
        s_and_b32 s{T2}, s{T2}, 7
        s_mul_i32 s{T2}, s{T2}, {8*6144}
        s_lshl_b32 s{T3}, s{T3}, 11
        s_add_u32 s{T2}, s{T2}, s{T3}
        s_sub_u32 s{T2}, s{T2}, {(n if n < 4 else n-4)*1024}
        v_add_u32 v{10+n}, s{T2}, v2
        """)
    a(f"""
    v_mov_b32 v18, 0
    s_mul_i32 s{S_WL2}, s{T0}, 6144
    s_add_u32 s{S_WL2}, s{S_WL2}, 16384
    s_mov_b32 s{S_WOF}, 0
    """)
    issue_w()
    for _ in range(3):
        issue_x(); issue_w()
    a(f"""
    s_cmp_lg_u32 s2, 0
    s_cbranch_scc1 P1_NONON
    s_cmp_lg_u32 s{S_W}, 7
    s_cbranch_scc1 P1_NONON
    s_memrealtime s[{S_NON}:{S_NON+1}]
    s_waitcnt lgkmcnt(0)
    s_or_b32 s{S_NON}, s{S_NON}, 1
    v_mov_b32 v16, s{S_NON}
    v_mov_b32 v17, s{S_NON+1}
    global_store_dwordx2 v18, v[16:17], s[{S_DBG}:{S_DBG+1}] sc1
    P1_NONON:
    s_waitcnt vmcnt(30)
    s_barrier
    s_mov_b32 s{S_B}, 1
    P1_LLOOP:
    s_waitcnt vmcnt(20)
    s_barrier
    """)
    issue_x(); issue_w()
    a(f"""
    s_cmp_lg_u32 s{S_B}, 8
    s_cbranch_scc1 P1_NONSKIP
    global_load_dwordx2 v[16:17], v18, s[{S_DBG}:{S_DBG+1}] sc1
    P1_NONSKIP:
    s_add_u32 s{S_B}, s{S_B}, 1
    s_cmp_lt_u32 s{S_B}, 13
    s_cbranch_scc1 P1_LLOOP
    s_waitcnt vmcnt(20)
    s_barrier
    s_waitcnt vmcnt(10)
    s_barrier
    s_waitcnt vmcnt(0)
    s_barrier
    s_mov_b32 s{SRD_WS}, s{S_WS}
    s_and_b32 s{SRD_WS+1}, s{S_WS+1}, 0xffff
    s_mov_b32 s{SRD_WS+2}, {WS_SIZE}
    s_mov_b32 s{SRD_WS+3}, 0x20000
    s_and_b32 s{S_HH}, s{S_W}, 1
    s_lshr_b32 s{S_TH}, s{S_W}, 1
    s_and_b32 s{S_TH}, s{S_TH}, 1
    v_lshlrev_b32 v3, 4, v0
    s_cmp_lg_u32 s{S_W}, 7
    s_cbranch_scc1 P1_NONDONE
    s_mov_b32 s{S_SPIN}, 0
    P1_NONPOLL:
    v_readfirstlane_b32 s{S_NON}, v16
    v_readfirstlane_b32 s{S_NON+1}, v17
    s_add_u32 s{S_SPIN}, s{S_SPIN}, 1
    s_cmp_ge_u32 s{S_SPIN}, {SPIN_MAX}
    s_cbranch_scc1 P1_NONDONE
    s_cmp_eq_u32 s{S_NON}, 0
    s_cbranch_scc0 P1_NONDONE
    s_sleep 2
    global_load_dwordx2 v[16:17], v18, s[{S_DBG}:{S_DBG+1}] sc1
    s_waitcnt vmcnt(0)
    s_branch P1_NONPOLL
    P1_NONDONE:
    s_barrier
    """)
    Q = 4; CM = 16; SA, SB = 32, 48; P = 64; KF = 72; VF = 80; L = 88; ONES = 92; O = 96
    VCUR, VNXT, VL16 = 1, 2, 3
    VD = 112
    VW = 116
    QXA = 120
    a("P2_START:")
    a(f"""
    s_lshl_b32 s{T0}, s{S_CG}, 7
    s_add_u32 s{SRD_WO}, s{S_WO}, s{T0}
    s_addc_u32 s{SRD_WO+1}, s{S_WO+1}, 0
    s_and_b32 s{SRD_WO+1}, s{SRD_WO+1}, 0xffff
    s_sub_u32 s{SRD_WO+2}, {1024*2048}, s{T0}
    s_mov_b32 s{SRD_WO+3}, 0x20000
    s_mov_b32 s{SRD_D}, s{SRD_WS}
    s_mov_b32 s{SRD_D+1}, s{SRD_WS+1}
    s_mov_b32 s{SRD_D+2}, s{SRD_WS+2}
    s_mov_b32 s{SRD_D+3}, s{SRD_WS+3}
    v_lshrrev_b32 v{VW}, 3, v0
    v_lshrrev_b32 v{VW+1}, 2, v0
    v_lshrrev_b32 v{VW+2}, 4, v0
    v_xor_b32 v{VW+1}, v{VW+1}, v{VW+2}
    v_and_b32 v{VW+1}, 1, v{VW+1}
    v_lshlrev_b32 v{VW+1}, 6, v{VW+1}
    v_and_b32 v{VW+2}, 3, v0
    v_lshlrev_b32 v{VW+2}, 4, v{VW+2}
    v_add_u32 v{VW+1}, v{VW+1}, v{VW+2}
    s_lshl_b32 s{T0}, s{S_W}, 5
    v_add_u32 v{VW}, s{T0}, v{VW}
    v_lshlrev_b32 v{VW}, 11, v{VW}
    v_add_u32 v{VW}, v{VW}, v{VW+1}
    v_add_u32 v{VW+1}, {16384-1024}, v{VW}
    v_add_u32 v{VW+2}, {32768-2048}, v{VW}
    v_add_u32 v{VW+3}, {49152-3072}, v{VW}
    v_mov_b32 v{VD}, v{VL16}
    v_mov_b32 v{VD+1}, v{VL16}
    v_mov_b32 v{VD+2}, v{VL16}
    v_mov_b32 v{VD+3}, v{VL16}
    s_lshr_b32 s{T0}, s{S_W}, 2
    s_lshl_b32 s{T1}, s{S_HP}, 1
    s_add_u32 s{T1}, s{T1}, s{T0}
    s_lshl_b32 s{T1}, s{T1}, 18
    s_and_b32 s{T2}, s{S_W}, 3
    s_lshl_b32 s{T2}, s{T2}, 12
    s_add_u32 s{S_BASE}, s{T1}, s{T2}
    s_lshl_b32 s{S_WL}, s{S_W}, 12
    s_mov_b32 s{S_STEP}, 16384
    s_mov_b32 s{S_IDX}, s{S_TB}
    s_lshl_b32 s{T0}, s{S_HH}, 14
    v_add_u32 v{VCUR}, s{T0}, v{VL16}
    s_and_b32 s{T0}, s{S_W}, 3
    s_lshl_b32 s{T0}, s{T0}, 11
    s_add_u32 s{T0}, s{T0}, {QX}
    v_add_u32 v{QXA}, s{T0}, v{VL16}
    v_lshrrev_b32 v{ONES}, 2, v0
    v_lshrrev_b32 v{ONES+1}, 4, v0
    v_xor_b32 v{ONES}, v{ONES}, v{ONES+1}
    v_and_b32 v{ONES}, 1, v{ONES}
    v_cmp_eq_u32 vcc, 0, v{ONES}
    v_mov_b32 v{ONES+1}, 0x3f803f80
    s_nop 0
    v_cndmask_b32 v{ONES}, 0, v{ONES+1}, vcc
    s_nop 0
    v_mov_b32 v{ONES+1}, v{ONES}
    v_mov_b32 v{ONES+2}, v{ONES}
    v_mov_b32 v{ONES+3}, v{ONES}
    s_waitcnt lgkmcnt(0)
    s_barrier
    """)
    stamp(a, 3)
    a(f"""
    s_add_u32 m0, s{S_WL}, 131072
    s_cmp_lt_u32 s{S_W}, 4
    s_cbranch_scc1 P2_NOQ
    ds_read_b128 {vr(Q,4)}, v{QXA}
    ds_read_b128 {vr(Q+4,4)}, v{QXA} offset:1024
    P2_NOQ:
    ds_read_b128 {vr(KF,4)}, v{VCUR}
    ds_read_b128 {vr(KF+4,4)}, v{VCUR} offset:1024
    """)
    for n in range(4):
        a(f"buffer_load_dwordx4 v{VW+n}, s[{SRD_WO}:{SRD_WO+3}], 0 offen offset:{n*1024} lds")
    for r in range(16): a(f"v_mov_b32 v{O+r}, 0")
    for r in range(4): a(f"v_mov_b32 v{L+r}, 0")
    for r in range(8): a(f"v_mov_b32 v{P+r}, 0")
    for r in range(8): a(f"v_mov_b32 v{VF+r}, 0")
    a(f"""
    s_waitcnt lgkmcnt(0)
    v_mfma_f32_32x32x16_bf16 {vr(SA,16)}, {vr(KF,4)}, {vr(Q,4)}, 0
    v_mfma_f32_32x32x16_bf16 {vr(SA,16)}, {vr(KF+4,4)}, {vr(Q+4,4)}, {vr(SA,16)}
    s_nop 15
    """)
    a(f"v_max3_f32 v{CM}, v{SA}, v{SA+1}, v{SA+2}")
    for i in range(3, 15, 2):
        a(f"v_max3_f32 v{CM}, v{CM}, v{SA+i}, v{SA+i+1}")
    a(f"""
    v_max_f32 v{CM}, v{CM}, v{SA+15}
    v_mov_b32 v{CM+1}, v{CM}
    s_nop 1
    v_permlane32_swap_b32 v{CM}, v{CM+1}
    s_nop 1
    v_max_f32 v{CM}, v{CM}, v{CM+1}
    v_sub_f32 v{CM}, 0, v{CM}
    """)
    for i in range(1, 16): a(f"v_mov_b32 v{CM+i}, v{CM}")
    a(f"""
    s_nop 1
    v_mfma_f32_32x32x16_bf16 {vr(SA,16)}, {vr(KF,4)}, {vr(Q,4)}, {vr(CM,16)}
    v_mfma_f32_32x32x16_bf16 {vr(SA,16)}, {vr(KF+4,4)}, {vr(Q+4,4)}, {vr(SA,16)}
    s_mov_b32 s{S_C}, 0
    s_mov_b32 s{S_MASK}, 0x8000
    s_nop 13
    """)
    def exps(sa, lo, hi):
        for i in range(lo, hi): a(f"v_exp_f32 v{sa+i}, v{sa+i}")
    def cvts(sa, lo, hi):
        for i in range(lo, hi): a(f"v_cvt_pk_bf16_f32 v{P+i}, v{sa+2*i}, v{sa+2*i+1}")
    def QK0(sb): a(f"v_mfma_f32_32x32x16_bf16 {vr(sb,16)}, {vr(KF,4)}, {vr(Q,4)}, {vr(CM,16)}")
    def QK1(sb): a(f"v_mfma_f32_32x32x16_bf16 {vr(sb,16)}, {vr(KF+4,4)}, {vr(Q+4,4)}, {vr(sb,16)}")
    def PV0(): a(f"v_mfma_f32_32x32x16_bf16 {vr(O,16)}, {vr(VF,4)}, {vr(P,4)}, {vr(O,16)}")
    def PV1(): a(f"v_mfma_f32_32x32x16_bf16 {vr(O,16)}, {vr(VF+4,4)}, {vr(P+4,4)}, {vr(O,16)}")
    def SM0(): a(f"v_mfma_f32_16x16x32_bf16 {vr(L,4)}, {vr(ONES,4)}, {vr(P,4)}, {vr(L,4)}")
    def SM1(): a(f"v_mfma_f32_16x16x32_bf16 {vr(L,4)}, {vr(ONES,4)}, {vr(P+4,4)}, {vr(L,4)}")
    def readK(reg, off):
        a(f"ds_read_b128 {vr(KF,4)}, v{reg} offset:{off}\nds_read_b128 {vr(KF+4,4)}, v{reg} offset:{off+1024}")
    def readV(u):
        a(f"ds_read_b128 {vr(VF,4)}, v{VCUR} offset:{u*4096+2048}\nds_read_b128 {vr(VF+4,4)}, v{VCUR} offset:{u*4096+3072}")
    def piece(n):
        a(f"buffer_load_dwordx4 v{VD+n}, s[{SRD_D}:{SRD_D+3}], s{S_SOFF} offen offset:{n*1024} sc1 lds")
    def next_chunk_params():
        a(f"""
        s_add_u32 s{S_IDX}, s{S_IDX}, 1
        s_and_b32 s{S_IDX}, s{S_IDX}, 15
        s_mul_i32 s{S_SOFF}, s{S_IDX}, s{S_STEP}
        s_add_u32 s{S_SOFF}, s{S_SOFF}, s{S_BASE}
        """)
    def set_m0_for(creg_or_const, add, const=True):
        if const:
            c = (creg_or_const + add) & 3
            g = c ^ (c >> 1)
            a(f"s_add_u32 m0, s{S_WL}, {g*32768}")
        else:
            a(f"""
            s_add_u32 s{T0}, s{creg_or_const}, {add}
            s_and_b32 s{T0}, s{T0}, 3
            s_lshr_b32 s{T1}, s{T0}, 1
            s_xor_b32 s{T0}, s{T0}, s{T1}
            s_lshl_b32 s{T0}, s{T0}, 15
            s_add_u32 m0, s{T0}, s{S_WL}
            """)
    def tile(u, first):
        sa, sb = (SA, SB) if u % 2 == 0 else (SB, SA)
        a(f"s_setprio {3-u}")
        if u < 3:
            readK(VCUR, (u+1)*4096)
            a("s_waitcnt lgkmcnt(2)")
        else:
            a(f"v_xor_b32 v{VNXT}, s{S_MASK}, v{VCUR}")
            a("s_waitcnt lgkmcnt(0)")
        PV0()
        if u < 3 and not first: piece(u + 1)
        exps(sa, 0, 4); SM0()
        if first and u == 2:
            a(f"""
            s_waitcnt vmcnt(4)
            s_barrier
            """)
            stamp(a, 4)
            a(f"""
            s_cmp_lg_u32 s{S_W}, 7
            s_cbranch_scc1 P2_NOFLAG
            s_lshl_b32 s{T0}, s{S_HP}, 7
            s_lshl_b32 s{T1}, s{S_TB}, 3
            s_add_u32 s{T0}, s{T0}, s{T1}
            s_add_u32 s{T0}, s{T0}, {WS_F1}
            v_mov_b32 v122, s{S_NON}
            v_mov_b32 v123, s{S_NON+1}
            v_mov_b32 v124, 0
            s_mov_b64 s[{S_EX}:{S_EX+1}], exec
            s_mov_b64 exec, 1
            buffer_store_dwordx2 v[122:123], v124, s[{SRD_WS}:{SRD_WS+3}], s{T0} offen sc1
            s_mov_b64 exec, s[{S_EX}:{S_EX+1}]
            P2_NOFLAG:
            """)
        if u == 3:
            if first:
                a(f"""
                s_cmp_lg_u32 s{S_W}, 7
                s_cbranch_scc1 P2_NOPOLL
                s_lshl_b32 s{T0}, s{S_HP}, 7
                s_add_u32 s{T0}, s{T0}, {WS_F1}
                v_and_b32 v124, 15, v0
                v_lshlrev_b32 v124, 3, v124
                s_mov_b32 s{S_SPIN}, 0
                P2_POLL:
                buffer_load_dwordx2 v[122:123], v124, s[{SRD_WS}:{SRD_WS+3}], s{T0} offen sc1
                s_waitcnt vmcnt(0)
                v_cmp_ne_u32 vcc, s{S_NON}, v122
                v_cmp_ne_u32 s[{S_EX}:{S_EX+1}], s{S_NON+1}, v123
                s_nop 1
                s_or_b64 vcc, vcc, s[{S_EX}:{S_EX+1}]
                s_add_u32 s{S_SPIN}, s{S_SPIN}, 1
                s_cmp_ge_u32 s{S_SPIN}, {SPIN_MAX}
                s_cbranch_scc1 P2_NOPOLL
                s_cmp_eq_u64 vcc, 0
                s_cbranch_scc1 P2_NOPOLL
                s_sleep 1
                s_branch P2_POLL
                P2_NOPOLL:
                s_barrier
                """)
                stamp(a, 5)
                for cl in (1, 2):
                    next_chunk_params()
                    set_m0_for(cl, 0)
                    a("s_nop 0")
                    for n in range(4): piece(n)
            a(f"""
            s_waitcnt vmcnt(4)
            s_barrier
            """)
            if first: stamp(a, 6)
            if not first:
                a(f"""
                s_cmp_lg_u32 s{S_C}, 13
                s_cbranch_scc1 P2_NOSW
                s_mov_b32 s{SRD_D}, s{SRD_WO}
                s_mov_b32 s{SRD_D+1}, s{SRD_WO+1}
                s_mov_b32 s{SRD_D+2}, s{SRD_WO+2}
                s_mov_b32 s{SRD_D+3}, s{SRD_WO+3}
                s_mov_b32 s{S_BASE}, 0
                s_mov_b32 s{S_IDX}, 0
                s_mov_b32 s{S_STEP}, {256*2048}
                v_mov_b32 v{VD}, v{VW}
                v_mov_b32 v{VD+1}, v{VW+1}
                v_mov_b32 v{VD+2}, v{VW+2}
                v_mov_b32 v{VD+3}, v{VW+3}
                P2_NOSW:
                """)
            readK(VNXT, 0)
            next_chunk_params()
            if first: set_m0_for(3, 0)
            else: set_m0_for(S_C, 3, const=False)
            a("s_nop 0")
            piece(0)
        exps(sa, 4, 6); PV1(); readV(u); exps(sa, 6, 10); SM1(); exps(sa, 10, 12)
        a("s_waitcnt lgkmcnt(2)")
        QK0(sb); exps(sa, 12, 16); QK1(sb); cvts(sa, 0, 8)
    def chunk_end():
        a(f"""
        v_mov_b32 v{VCUR}, v{VNXT}
        s_xor_b32 s{S_MASK}, s{S_MASK}, 0x18000
        s_add_u32 s{S_C}, s{S_C}, 1
        """)
    for u in range(4): tile(u, True)
    chunk_end()
    a("P2_LOOP:")
    for u in range(4): tile(u, False)
    chunk_end()
    a(f"""
    s_cmp_lt_u32 s{S_C}, 16
    s_cbranch_scc1 P2_LOOP
    s_setprio 0
    """)
    stamp(a, 7)
    a("s_waitcnt lgkmcnt(0)\ns_nop 1"); PV0(); SM0(); PV1(); SM1()
    a("s_nop 15")
    Z = 122
    a(f"v_fma_f32 v{Z}, v{L}, 0, 0")
    for r in range(16): a(f"v_fma_f32 v{Z}, v{O+r}, 0, v{Z}")
    a(f"""
    v_cmp_u_f32 vcc, v{Z}, v{Z}
    s_nop 4
    s_cbranch_vccnz P2_SLOW
    P2_NORM:
    v_rcp_f32 v{L+1}, v{L}
    s_nop 0
    """)
    for r in range(16): a(f"v_mul_f32 v{O+r}, v{O+r}, v{L+1}")
    for i in range(8): a(f"v_cvt_pk_bf16_f32 v{P+i}, v{O+2*i}, v{O+2*i+1}")
    a(f"""
    s_lshl_b32 s{T0}, s{S_TB}, 2
    s_lshl_b32 s{T1}, s{S_TH}, 1
    s_add_u32 s{T0}, s{T0}, s{T1}
    s_lshr_b32 s{T1}, s{S_W}, 2
    s_add_u32 s{T0}, s{T0}, s{T1}
    s_lshl_b32 s{T1}, s{S_HP}, 1
    s_add_u32 s{T1}, s{T1}, s{S_HH}
    s_lshl_b32 s{T0}, s{T0}, 16
    s_lshl_b32 s{T1}, s{T1}, 11
    s_add_u32 s{T0}, s{T0}, s{T1}
    s_add_u32 s{T0}, s{T0}, {WS_O}
    buffer_store_dwordx4 {vr(P,4)}, v{VL16}, s[{SRD_WS}:{SRD_WS+3}], s{T0} offen sc1
    buffer_store_dwordx4 {vr(P+4,4)}, v{VL16}, s[{SRD_WS}:{SRD_WS+3}], s{T0} offen offset:1024 sc1
    """)
    for n in (1, 2, 3): piece(n)
    OB = 128; ACC3 = 16; WF = [48, 56]; VT0, VT1 = 4, 5
    a(f"""
    v_lshrrev_b32 v6, 2, v0
    v_and_b32 v6, 3, v6              ; r
    v_lshrrev_b32 v7, 5, v0          ; h
    v_lshlrev_b32 v7, 2, v7
    v_add_u32 v7, v7, v6
    v_lshlrev_b32 v7, 7, v7          ; (4h+r)*128
    v_lshrrev_b32 v6, 1, v6
    v_lshlrev_b32 v6, 6, v6
    v_add_u32 v7, v7, v6
    v_lshrrev_b32 v6, 4, v0
    v_and_b32 v6, 1, v6
    v_lshlrev_b32 v6, 5, v6
    v_add_u32 v7, v7, v6
    v_and_b32 v6, 3, v0
    v_lshlrev_b32 v6, 3, v6
    v_add_u32 v7, v7, v6
    s_lshr_b32 s{T2}, s{S_W}, 2
    s_mov_b32 s{T3}, 32768
    s_mov_b32 s{T4}, {98304 - 32768}
    s_cmp_eq_u32 s{T2}, 0
    s_cselect_b32 s{T3}, 131072, s{T3}
    s_cselect_b32 s{T4}, {(0 - 131072) & 0xffffffff}, s{T4}
    v_add_u32 v{VT0}, s{T3}, v7
    v_xor_b32 v{VT1}, 64, v{VT0}
    """)
    for r in range(32): a(f"v_mov_b32 v{ACC3+r}, 0")
    a(f"""
    s_waitcnt vmcnt(3)
    s_barrier
    """)
    stamp(a, 8)
    a(f"""
    s_cmp_lg_u32 s{S_W}, 7
    s_cbranch_scc1 P3_NOPOLL
    s_lshl_b32 s{T0}, s{S_TB}, 7
    s_lshl_b32 s{T1}, s{S_HP}, 3
    s_add_u32 s{T0}, s{T0}, s{T1}
    s_add_u32 s{T0}, s{T0}, {WS_F2}
    v_mov_b32 v122, s{S_NON}
    v_mov_b32 v123, s{S_NON+1}
    v_mov_b32 v124, 0
    s_mov_b64 s[{S_EX}:{S_EX+1}], exec
    s_mov_b64 exec, 1
    buffer_store_dwordx2 v[122:123], v124, s[{SRD_WS}:{SRD_WS+3}], s{T0} offen sc1
    s_mov_b64 exec, s[{S_EX}:{S_EX+1}]
    s_lshl_b32 s{T0}, s{S_TB3}, 7
    s_add_u32 s{T0}, s{T0}, {WS_F2}
    v_and_b32 v124, 15, v0
    v_lshlrev_b32 v124, 3, v124
    s_mov_b32 s{S_SPIN}, 0
    P3_POLL:
    buffer_load_dwordx2 v[122:123], v124, s[{SRD_WS}:{SRD_WS+3}], s{T0} offen sc1
    s_waitcnt vmcnt(0)
    v_cmp_ne_u32 vcc, s{S_NON}, v122
    v_cmp_ne_u32 s[{S_EX}:{S_EX+1}], s{S_NON+1}, v123
    s_nop 1
    s_or_b64 vcc, vcc, s[{S_EX}:{S_EX+1}]
    s_add_u32 s{S_SPIN}, s{S_SPIN}, 1
    s_cmp_ge_u32 s{S_SPIN}, {SPIN_MAX}
    s_cbranch_scc1 P3_NOPOLL
    s_cmp_eq_u64 vcc, 0
    s_cbranch_scc1 P3_NOPOLL
    s_sleep 1
    s_branch P3_POLL
    P3_NOPOLL:
    s_waitcnt vmcnt(0)
    s_barrier
    """)
    stamp(a, 9)
    a(f"""
    s_lshl_b32 s{T0}, s{S_TB3}, 2
    s_and_b32 s{T1}, s{S_W}, 3
    s_add_u32 s{T0}, s{T0}, s{T1}        ; T
    s_lshl_b32 s{T1}, s{T0}, 16
    s_lshl_b32 s{T2}, s{T2}, 15
    s_add_u32 s{T1}, s{T1}, s{T2}
    s_add_u32 s{T1}, s{T1}, {WS_O}
    """)
    for i in range(32):
        a(f"buffer_load_dwordx4 {vr(OB+4*i,4)}, v{VL16}, s[{SRD_WS}:{SRD_WS+3}], s{T1} offen offset:{(i%4)*1024} sc1")
        if i % 4 == 3 and i < 31: a(f"s_add_u32 s{T1}, s{T1}, 4096")
    def wread(j, buf):
        jj = j % 16
        for ct, vt in ((0, VT0), (1, VT1)):
            for e in range(2):
                a(f"ds_read_b64_tr_b16 {vr(WF[buf]+4*ct+2*e,2)}, v{vt} offset:{jj*2048+e*1024}")
    wread(0, 0)
    for j in range(32):
        if j + 1 < 32:
            if j + 1 == 16:
                a(f"v_add_u32 v{VT0}, s{T4}, v{VT0}\nv_add_u32 v{VT1}, s{T4}, v{VT1}")
            wread(j + 1, (j + 1) % 2)
            a(f"s_waitcnt vmcnt({31-j}) lgkmcnt(4)")
        else:
            a(f"s_waitcnt vmcnt(0) lgkmcnt(0)")
        for ct in range(2):
            a(f"v_mfma_f32_32x32x16_bf16 {vr(ACC3+16*ct,16)}, {vr(WF[j%2]+4*ct,4)}, {vr(OB+4*j,4)}, {vr(ACC3+16*ct,16)}")
    stamp(a, 10)
    RED = 65536
    a(f"""
    s_lshl_b32 s{T1}, s{S_W}, 12
    s_add_u32 s{T1}, s{T1}, {RED}
    v_add_u32 v6, s{T1}, v{VL16}
    s_xor_b32 s{T2}, s{S_W}, 4
    s_lshl_b32 s{T2}, s{T2}, 12
    s_add_u32 s{T2}, s{T2}, {RED}
    v_add_u32 v7, s{T2}, v{VL16}
    s_mov_b32 s{SRD_OUT}, s{S_OUT}
    s_and_b32 s{SRD_OUT+1}, s{S_OUT+1}, 0xffff
    s_mov_b32 s{SRD_OUT+2}, {2048*1024*2}
    s_mov_b32 s{SRD_OUT+3}, 0x20000
    v_and_b32 v1, 31, v0
    s_lshl_b32 s{T0}, s{T0}, 5
    v_add_u32 v1, s{T0}, v1
    v_lshlrev_b32 v1, 11, v1
    v_lshrrev_b32 v2, 5, v0
    v_lshlrev_b32 v2, 4, v2
    v_add_u32 v1, v1, v2
    s_lshr_b32 s{T3}, s{S_W}, 2
    s_lshl_b32 s{T4}, s{S_CG}, 7
    s_lshl_b32 s{T5}, s{T3}, 6
    s_add_u32 s{T4}, s{T4}, s{T5}
    v_add_u32 v1, s{T4}, v1
    s_cmp_eq_u32 s{T3}, 0
    s_cbranch_scc1 P3_KH0
    """)
    def red(send, keep):
        a("s_nop 4")
        for i in range(4): a(f"ds_write_b128 v6, {vr(send+4*i,4)} offset:{1024*i}")
        a("s_waitcnt lgkmcnt(0)\ns_barrier")
        for i in range(4): a(f"ds_read_b128 {vr(64+4*i,4)}, v7 offset:{1024*i}")
        a("s_waitcnt lgkmcnt(0)")
        for r in range(16): a(f"v_add_f32 v{64+r}, v{64+r}, v{keep+r}")
    red(ACC3, ACC3 + 16)
    a("s_branch P3_FIN")
    a("P3_KH0:")
    red(ACC3 + 16, ACC3)
    a("P3_FIN:")
    for i in range(8): a(f"v_cvt_pk_bf16_f32 v{80+i}, v{64+2*i}, v{64+2*i+1}")
    a(f"""
    s_nop 1
    v_permlane32_swap_b32 v80, v82
    v_permlane32_swap_b32 v81, v83
    v_permlane32_swap_b32 v84, v86
    v_permlane32_swap_b32 v85, v87
    s_nop 1
    buffer_store_dwordx4 v[80:83], v1, s[{SRD_OUT}:{SRD_OUT+3}], 0 offen
    buffer_store_dwordx4 v[84:87], v1, s[{SRD_OUT}:{SRD_OUT+3}], 0 offen offset:32
    """)
    if STAMP:
        stamp(a, 11)
        a(f"""
        s_memrealtime s[98:99]
        s_waitcnt lgkmcnt(0)
        s_lshl_b32 s{T0}, s2, 3
        s_add_u32 s{T0}, s{T0}, s{S_W}
        s_lshl_b32 s{T0}, s{T0}, 6
        s_add_u32 s{T0}, s{T0}, {STAMP_OFF}
        v_mov_b32 v1, s{T0}
        v_cmp_eq_u32 vcc, 0, v0
        s_and_saveexec_b64 s[{S_EX}:{S_EX+1}], vcc
        v_mov_b32 v4, s96
        v_mov_b32 v5, s98
        v_mov_b32 v6, s{S_SPIN}
        v_mov_b32 v7, 0
        global_store_dwordx4 v1, v[4:7], s[{S_WS}:{S_WS+1}]
        """)
        for g in range(3):
            for i in range(4): a(f"v_mov_b32 v{4+i}, s{ST0+4*g+i}")
            a(f"global_store_dwordx4 v1, v[4:7], s[{S_WS}:{S_WS+1}] offset:{16+16*g}")
    a("s_endpgm")
    a("P2_SLOW:")
    a(f"""
    s_lshl_b32 s{T0}, s{S_HP}, 1
    s_add_u32 s{T0}, s{T0}, s{S_HH}
    s_lshl_b32 s{T0}, s{T0}, 18
    v_mov_b32 v{CM}, 0xff800000
    s_mov_b32 s{T1}, 0
    P2_SLOW1:
    s_add_u32 s{T2}, s{T0}, s{T1}
    buffer_load_dwordx4 {vr(KF,4)}, v{VL16}, s[{SRD_WS}:{SRD_WS+3}], s{T2} offen sc1
    buffer_load_dwordx4 {vr(KF+4,4)}, v{VL16}, s[{SRD_WS}:{SRD_WS+3}], s{T2} offen offset:1024 sc1
    s_waitcnt vmcnt(0)
    v_mfma_f32_32x32x16_bf16 {vr(SA,16)}, {vr(KF,4)}, {vr(Q,4)}, 0
    v_mfma_f32_32x32x16_bf16 {vr(SA,16)}, {vr(KF+4,4)}, {vr(Q+4,4)}, {vr(SA,16)}
    s_nop 15
    """)
    for i in range(0, 16, 2):
        a(f"v_max3_f32 v{CM}, v{CM}, v{SA+i}, v{SA+i+1}")
    a(f"""
    s_add_u32 s{T1}, s{T1}, 4096
    s_cmp_lt_u32 s{T1}, {64*4096}
    s_cbranch_scc1 P2_SLOW1
    v_mov_b32 v{CM+1}, v{CM}
    s_nop 1
    v_permlane32_swap_b32 v{CM}, v{CM+1}
    s_nop 1
    v_max_f32 v{CM}, v{CM}, v{CM+1}
    v_sub_f32 v{CM}, 0, v{CM}
    """)
    for i in range(1, 16): a(f"v_mov_b32 v{CM+i}, v{CM}")
    for r in range(16): a(f"v_mov_b32 v{O+r}, 0")
    for r in range(4): a(f"v_mov_b32 v{L+r}, 0")
    a(f"""
    s_mov_b32 s{T1}, 0
    P2_SLOW2:
    s_add_u32 s{T2}, s{T0}, s{T1}
    buffer_load_dwordx4 {vr(KF,4)}, v{VL16}, s[{SRD_WS}:{SRD_WS+3}], s{T2} offen sc1
    buffer_load_dwordx4 {vr(KF+4,4)}, v{VL16}, s[{SRD_WS}:{SRD_WS+3}], s{T2} offen offset:1024 sc1
    buffer_load_dwordx4 {vr(VF,4)}, v{VL16}, s[{SRD_WS}:{SRD_WS+3}], s{T2} offen offset:2048 sc1
    buffer_load_dwordx4 {vr(VF+4,4)}, v{VL16}, s[{SRD_WS}:{SRD_WS+3}], s{T2} offen offset:3072 sc1
    s_waitcnt vmcnt(0)
    """)
    QK0(SA); QK1(SA)
    a("s_nop 15")
    exps(SA, 0, 16)
    a("s_nop 1")
    cvts(SA, 0, 8)
    a("s_nop 1")
    PV0(); PV1(); SM0(); SM1()
    a(f"""
    s_add_u32 s{T1}, s{T1}, 4096
    s_cmp_lt_u32 s{T1}, {64*4096}
    s_cbranch_scc1 P2_SLOW2
    s_nop 15
    s_branch P2_NORM
    K_END:
    s_endpgm
    """)
    return name, 256

def descriptor(name, vgpr, sgpr=102):
    acc = (vgpr + 3) // 4 * 4
    return f""".amdhsa_kernel {name}
  .amdhsa_next_free_vgpr {vgpr}
  .amdhsa_next_free_sgpr {sgpr}
  .amdhsa_accum_offset {acc}
  .amdhsa_group_segment_fixed_size 0
  .amdhsa_kernarg_size 48
  .amdhsa_user_sgpr_count 2
  .amdhsa_user_sgpr_kernarg_segment_ptr 1
  .amdhsa_system_sgpr_workgroup_id_x 1
.end_amdhsa_kernel
"""

def main():
    hdr = """; MHA block, fused: QKV GEMM -> attention -> out projection (one persistent workgroup per CU)
; @launch grid=(256,1,1) block=(512,1,1) lds=163840
.amdgcn_target "amdgcn-amd-amdhsa--gfx950"
.text
"""
    a = A()
    n, v = gen(a)
    out = hdr + a.text() + '.section .rodata,"a"\n.p2align 6\n' + descriptor(n, v)
    path = [x for x in ARGS if not x.startswith("--")]
    open(path[0] if path else "fused.s", "w").write(out)

main()
```

```python
import struct, sys

def f32hex(x):
    return "0x%08x" % struct.unpack("<I", struct.pack("<f", x))[0]

class A:
    def __init__(self):
        self.l = []
    def __call__(self, s):
        for line in s.strip("\n").split("\n"):
            t = line.strip()
            if not t: continue
            self.l.append(t if t.endswith(":") else "  " + t)
    def text(self):
        return "\n".join(self.l) + "\n"

def vr(b, n=1):
    return f"v{b}" if n == 1 else f"v[{b}:{b+n-1}]"
def sr(b, n=1):
    return f"s{b}" if n == 1 else f"s[{b}:{b+n-1}]"

ARGS = sys.argv[1:]
OPT = set(x[6:] for x in ARGS if x.startswith("--opt="))
STAMP = "--stamp" in ARGS
def optval(name, default):
    for x in ARGS:
        if x.startswith(f"--{name}="): return x[len(name)+3:]
    return default

C_SCALE = 1.4426950408889634 / (32 ** 0.5)
WS_KV = 0
WS_O = 8 << 20
WS_F1 = 12 << 20
WS_F2 = (12 << 20) + 4096
WS_SIZE = 16 << 20
STAMP_OFF = 32 << 20
SPIN_MAX = 1 << 17

S_X, S_WQ, S_WO, S_OUT, S_DBG, S_WS = 4, 6, 8, 10, 12, 14
S_HP, S_TB, S_W, S_HH = 16, 17, 18, 19
SRD_WS, SRD_X, SRD_W, SRD_OUT, SRD_WO, SRD_D = 20, 24, 28, 32, 36, 40
S_TH, S_TB3, S_CG = 44, 45, 46
T0, T1, T2, T3, T4, T5 = 47, 48, 49, 50, 51, 52
S_C, S_IDX, S_STEP, S_BASE, S_SOFF, S_WL, S_MASK = 56, 57, 58, 59, 60, 61, 62
S_SLOT, S_XO, S_WOF, S_XL, S_WL2, S_B = 56, 57, 58, 59, 60, 61
S_NON = 64
S_SPIN = 66
S_EX = 68
ST0 = 70
NSTAMP = 12

stamp_n = [0]
def stamp(a, idx):
    if not STAMP: return
    a(f"s_memtime s[98:99]\ns_waitcnt lgkmcnt(0)\ns_mov_b32 s{ST0+idx}, s98")

K1_STAGE = 40960

def gen(a):
    name = "standalone__mha_block__prompt_kernel"
    a.l.append(f".globl {name}")
    a.l.append(".p2align 8")
    a.l.append(f".type {name},@function")
    a.l.append(f"{name}:")
    a(f"""
    s_cmp_ge_u32 s2, 256
    s_cbranch_scc1 K_END
    s_load_dwordx8 s[4:11], s[0:1], 0
    s_load_dwordx4 s[12:15], s[0:1], 32
    """)
    if STAMP:
        a("s_memrealtime s[96:97]")
        for i in range(NSTAMP): a(f"s_mov_b32 s{ST0+i}, 0")
        a(f"s_memtime s[98:99]")
    a(f"""
    v_lshrrev_b32 v1, 6, v0
    {"v_xor_b32 v1, 4, v1" if "swap" in OPT else ""}
    v_and_b32 v0, 63, v0
    s_and_b32 s{T0}, s2, 7            ; xcd
    s_lshr_b32 s{T1}, s2, 3           ; loc
    v_readfirstlane_b32 s{S_W}, v1
    s_lshr_b32 s{S_HP}, s{T0}, 1
    s_lshl_b32 s{S_HP}, s{S_HP}, 2
    s_add_u32 s{T2}, s{T1}, {int(optval('hprot', 0))}
    s_and_b32 s{T2}, s{T2}, 3
    s_add_u32 s{S_HP}, s{S_HP}, s{T2}
    s_and_b32 s{S_TB}, s{T0}, 1
    s_lshl_b32 s{S_TB}, s{S_TB}, 3
    s_lshr_b32 s{T2}, s{T1}, 2
    s_add_u32 s{S_TB}, s{S_TB}, s{T2}
    s_lshl_b32 s{S_TB3}, s{T0}, 1
    s_and_b32 s{T2}, s{T1}, 1
    s_add_u32 s{S_TB3}, s{S_TB3}, s{T2}
    s_lshr_b32 s{S_CG}, s{T1}, 1
    s_waitcnt lgkmcnt(0)
    """)
    if STAMP: a(f"s_mov_b32 s{ST0}, s98")
    a(f"""
    s_cmp_ge_u32 s{S_W}, 4
    s_cbranch_scc1 P1_LOADER
    """)
    XA = [4, 5, 6, 7]; WA = 8
    setA = dict(x0=16, x1=20, wq=24, wk=28, wv=32)
    setB = dict(x0=36, x1=40, wq=44, wk=48, wv=52)
    ACC = 64
    a(f"""
    s_setprio 1
    s_and_b32 s{S_HH}, s{S_W}, 1
    s_lshr_b32 s{S_TH}, s{S_W}, 1
    v_and_b32 v1, 31, v0
    v_lshrrev_b32 v2, 5, v0            ; h
    v_lshrrev_b32 v3, 1, v1
    v_and_b32 v3, 7, v3                ; (row>>1)&7
    v_xor_b32 v3, v3, v2               ; t = h ^ swz
    s_lshl_b32 s{T0}, s{S_TH}, 6
    v_add_u32 v1, s{T0}, v1            ; row
    v_lshlrev_b32 v1, 7, v1            ; row*128
    """)
    for j in range(4):
        a(f"""
        v_xor_b32 v9, {2*j}, v3
        v_lshlrev_b32 v9, 4, v9
        v_add_u32 v{XA[j]}, v1, v9
        """)
    a(f"""
    v_lshrrev_b32 v1, 2, v0
    v_and_b32 v1, 3, v1                ; r
    v_lshlrev_b32 v3, 3, v2            ; 8h
    v_add_u32 v3, v3, v1
    v_lshlrev_b32 v3, 7, v3            ; (8h+r)*128
    v_lshrrev_b32 v9, 1, v1            ; r>>1
    v_xor_b32 v9, s{S_HH}, v9
    v_lshlrev_b32 v9, 6, v9
    v_add_u32 v3, v3, v9
    v_lshrrev_b32 v9, 4, v0
    v_and_b32 v9, 1, v9
    v_lshlrev_b32 v9, 5, v9
    v_add_u32 v3, v3, v9
    v_and_b32 v9, 3, v0
    v_lshlrev_b32 v9, 3, v9
    v_add_u32 v3, v3, v9
    v_add_u32 v{WA}, 16384, v3
    """)
    if "ord" in OPT or "pf" in OPT:
        if "ord" in OPT: a("s_barrier")
        if "pf" in OPT:
            a(f"""
            s_and_b32 s{T0}, s2, 7
            s_lshr_b32 s{T1}, s2, 3
            s_cmp_ge_u32 s{S_W}, 2
            s_cbranch_scc1 PF_NOX
            s_and_b32 s{T2}, s{T0}, 1
            s_lshl_b32 s{T2}, s{T2}, 10
            s_lshr_b32 s{T3}, s{T0}, 1
            s_lshl_b32 s{T3}, s{T3}, 8
            s_add_u32 s{T2}, s{T2}, s{T3}
            s_lshl_b32 s{T3}, s{T1}, 3
            s_add_u32 s{T2}, s{T2}, s{T3}
            s_lshl_b32 s{T3}, s{S_W}, 2
            s_add_u32 s{T2}, s{T2}, s{T3}
            v_lshrrev_b32 v200, 4, v0
            v_add_u32 v200, s{T2}, v200
            v_lshlrev_b32 v200, 11, v200
            v_and_b32 v201, 15, v0
            v_lshlrev_b32 v201, 7, v201
            v_add_u32 v200, v200, v201
            global_load_dword v202, v200, s[{S_X}:{S_X+1}]
            PF_NOX:
            s_cmp_eq_u32 s{S_W}, 0
            s_cbranch_scc1 PF_NOW
            s_mul_i32 s{T2}, s{T1}, 96
            s_and_b32 s{T3}, s{T0}, 1
            s_mul_i32 s{T3}, s{T3}, 48
            s_add_u32 s{T2}, s{T2}, s{T3}
            s_sub_u32 s{T3}, s{S_W}, 1
            s_lshl_b32 s{T3}, s{T3}, 4
            s_add_u32 s{T2}, s{T2}, s{T3}
            v_lshrrev_b32 v200, 2, v0
            v_add_u32 v200, s{T2}, v200
            v_lshlrev_b32 v200, 11, v200
            v_and_b32 v201, 3, v0
            v_lshlrev_b32 v201, 7, v201
            v_add_u32 v200, v200, v201
            s_lshr_b32 s{T3}, s{T0}, 1
            s_lshl_b32 s{T3}, s{T3}, 9
            v_add_u32 v200, s{T3}, v200
            global_load_dword v203, v200, s[{S_WQ}:{S_WQ+1}]
            PF_NOW:
            """)
        if "ord" in OPT: a("s_barrier\ns_barrier")
    if "probe" in OPT: a("s_waitcnt vmcnt(0)\ns_branch FINSTAMP")
    for r in range(ACC, ACC + 96):
        a(f"v_mov_b32 v{r}, 0")
    RD = ["x0", "wq0", "wq1", "wk0", "wk1", "wv0", "wv1", "x1"]
    def rd(st, j, nm):
        if nm == "x0": a(f"ds_read_b128 {vr(st['x0'],4)}, v{XA[j]}")
        elif nm == "x1": a(f"ds_read_b128 {vr(st['x1'],4)}, v{XA[j]} offset:4096")
        else:
            si = {"q": 0, "k": 1, "v": 2}[nm[1]]; e = int(nm[2])
            a(f"ds_read_b64_tr_b16 {vr(st['w'+nm[1]]+2*e,2)}, v{WA} offset:{si*8192 + j*2048 + e*512}")
    def mf(st, i):
        tt = i // 3
        x = vr(st['x0' if tt == 0 else 'x1'], 4)
        k = i % 3
        d = vr(ACC + 32*k + 16*tt, 16)
        if k == 0: a(f"v_mfma_f32_32x32x16_bf16 {d}, {vr(st['wq'],4)}, {x}, {d}")
        elif k == 1: a(f"v_mfma_f32_32x32x16_bf16 {d}, {vr(st['wk'],4)}, {x}, {d}")
        else: a(f"v_mfma_f32_32x32x16_bf16 {d}, {x}, {vr(st['wv'],4)}, {d}")
    a(f"""
    s_mov_b32 s{T3}, 0
    s_mov_b32 s{T4}, 0
    s_barrier
    """)
    stamp(a, 1)
    for nm in RD: rd(setA, 0, nm)
    a("P1_LOOP:")
    for j in range(4):
        cur, nxt = (setA, setB) if j % 2 == 0 else (setB, setA)
        jn = (j + 1) % 4
        if j < 3:
            a("s_waitcnt lgkmcnt(5)"); mf(cur, 0); rd(nxt, jn, RD[0]); rd(nxt, jn, RD[1])
            a("s_waitcnt lgkmcnt(5)"); mf(cur, 1); rd(nxt, jn, RD[2]); rd(nxt, jn, RD[3])
            a("s_waitcnt lgkmcnt(5)"); mf(cur, 2); rd(nxt, jn, RD[4]); rd(nxt, jn, RD[5])
            a("s_waitcnt lgkmcnt(6)"); mf(cur, 3); rd(nxt, jn, RD[6]); rd(nxt, jn, RD[7])
            mf(cur, 4); mf(cur, 5)
        else:
            a("s_waitcnt lgkmcnt(5)"); mf(cur, 0)
            a(f"""
            s_add_u32 s{T4}, s{T4}, 1
            s_and_b32 s{T4}, s{T4}, 3
            s_mov_b32 s{T5}, {K1_STAGE}
            s_cselect_b32 s{T5}, s{T5}, {(-3*K1_STAGE) & 0xffffffff}
            s_waitcnt lgkmcnt(0)
            s_barrier
            """)
            mf(cur, 1)
            for r in XA + [WA]:
                a(f"v_add_u32 v{r}, s{T5}, v{r}")
            rd(nxt, jn, RD[0]); rd(nxt, jn, RD[1])
            mf(cur, 2); rd(nxt, jn, RD[2]); rd(nxt, jn, RD[3])
            mf(cur, 3); rd(nxt, jn, RD[4]); rd(nxt, jn, RD[5])
            mf(cur, 4); rd(nxt, jn, RD[6]); rd(nxt, jn, RD[7])
            mf(cur, 5)
            if "cs1" in OPT:
                a(f"s_memtime s[98:99]\ns_waitcnt lgkmcnt(0)\nv_mov_b32 v205, s98\nv_cmp_eq_u32 vcc, s{T3}, v0\ns_nop 1\nv_cndmask_b32 v204, v204, v205, vcc")
            a(f"""
            s_add_u32 s{T3}, s{T3}, 1
            s_cmp_lt_u32 s{T3}, 16
            s_cbranch_scc1 P1_LOOP
            """)
    stamp(a, 2)
    a(f"""
    s_setprio 0
    s_waitcnt lgkmcnt(0)
    s_mov_b32 s{SRD_WS}, s{S_WS}
    s_and_b32 s{SRD_WS+1}, s{S_WS+1}, 0xffff
    s_mov_b32 s{SRD_WS+2}, {WS_SIZE}
    s_mov_b32 s{SRD_WS+3}, 0x20000
    s_lshl_b32 s{T0}, s{S_HP}, 1
    s_add_u32 s{T0}, s{T0}, s{S_HH}
    s_lshl_b32 s{T1}, s{S_TB}, 2
    s_lshl_b32 s{T2}, s{S_TH}, 1
    s_add_u32 s{T1}, s{T1}, s{T2}
    s_lshl_b32 s{T3}, s{T0}, 18
    s_lshl_b32 s{T4}, s{T1}, 12
    s_add_u32 s{T3}, s{T3}, s{T4}
    s_add_u32 s{T4}, s{T3}, 4096         ; tt=1
    v_lshlrev_b32 v3, 4, v0              ; lane*16
    s_lshl_b32 s{T0}, s{S_HH}, 14
    s_lshl_b32 s{T1}, s{S_TH}, 13
    s_add_u32 s{T0}, s{T0}, s{T1}
    v_add_u32 v2, s{T0}, v3
    s_nop 3
    """)
    def cvt(dst, src, n):
        for i in range(n):
            a(f"v_cvt_pk_bf16_f32 v{dst+i}, v{src+2*i}, v{src+2*i+1}")
    cvt(16, ACC + 32, 8)
    cvt(24, ACC + 64, 8)
    for i in range(4):
        a(f"buffer_store_dwordx4 {vr(16+4*i,4)}, v3, s[{SRD_WS}:{SRD_WS+3}], s{T3} offen offset:{1024*i} sc1")
    cvt(32, ACC + 48, 8)
    cvt(40, ACC + 80, 8)
    for i in range(4):
        a(f"buffer_store_dwordx4 {vr(32+4*i,4)}, v3, s[{SRD_WS}:{SRD_WS+3}], s{T4} offen offset:{1024*i} sc1")
    for i in range(8):
        a(f"ds_write_b128 v2, {vr(16+4*i,4)} offset:{1024*i}")
    a(f"s_mov_b32 s{T0}, {f32hex(C_SCALE)}")
    for r in range(ACC + 16, ACC + 32):
        a(f"v_mul_f32 v{r}, s{T0}, v{r}")
    cvt(48, ACC + 16, 8)
    QX = 98304
    a(f"""
    s_lshl_b32 s{T1}, s{S_W}, 11
    s_add_u32 s{T1}, s{T1}, {QX}
    v_add_u32 v2, s{T1}, v3
    """)
    for r in range(ACC, ACC + 16):
        a(f"v_mul_f32 v{r}, s{T0}, v{r}")
    a(f"""
    ds_write_b128 v2, {vr(48,4)}
    ds_write_b128 v2, {vr(52,4)} offset:1024
    """)
    cvt(4, ACC, 8)
    a("s_branch P2_START")
    a("P1_LOADER:")
    a(f"""
    s_sub_u32 s{T0}, s{S_W}, 4         ; q
    s_lshl_b32 s{T1}, s{S_TB}, 18
    s_add_u32 s{SRD_X}, s{S_X}, s{T1}
    s_addc_u32 s{SRD_X+1}, s{S_X+1}, 0
    s_and_b32 s{SRD_X+1}, s{SRD_X+1}, 0xffff
    s_mov_b32 s{SRD_X+2}, 262144
    s_mov_b32 s{SRD_X+3}, 0x20000
    ; x voffsets v4..v7: row = 8*(4q+n) + (l>>3); chunk = (l&7) ^ (l>>4) ^ (4*(n&1)) ; minus n*1024 (inst offset)
    v_lshrrev_b32 v1, 3, v0          ; l>>3
    v_and_b32 v2, 7, v0
    v_lshrrev_b32 v3, 4, v0
    v_xor_b32 v2, v2, v3
    s_lshl_b32 s{T1}, s{T0}, 5       ; 32q
    v_add_u32 v3, s{T1}, v1
    v_lshlrev_b32 v3, 11, v3
    v_lshlrev_b32 v9, 4, v2
    v_add_u32 v4, v3, v9
    v_xor_b32 v9, 64, v9
    v_add_u32 v5, v3, v9
    v_add_u32 v5, {16384-1024}, v5
    v_add_u32 v6, {32768-2048}, v4
    v_add_u32 v7, {32768-2048}, v5
    s_lshl_b32 s{S_XL}, s{T0}, 12
    s_mov_b32 s{S_XO}, 0
    s_mov_b32 s{S_SLOT}, 0
    """)
    def issue_x():
        a(f"s_add_u32 m0, s{S_SLOT}, s{S_XL}\ns_nop 0")
        for n in range(4):
            if "nox" in OPT: a("s_nop 0"); continue
            a(f"buffer_load_dwordx4 v{4+n}, s[{SRD_X}:{SRD_X+3}], s{S_XO} offen offset:{n*1024} lds")
    def issue_w():
        a(f"s_add_u32 m0, s{S_SLOT}, s{S_WL2}\ns_add_u32 s{S_XO}, s{S_XO}, 128")
        for n in range(4):
            if "now" in OPT: continue
            a(f"buffer_load_dwordx4 v{10+n}, s[{SRD_W}:{SRD_W+3}], s{S_WOF} offen offset:{n*1024} lds")
        a(f"s_add_u32 m0, m0, 4096\ns_nop 0")
        for n in range(4, 6):
            if "now" in OPT: continue
            a(f"buffer_load_dwordx4 v{10+n}, s[{SRD_W}:{SRD_W+3}], s{S_WOF} offen offset:{(n-4)*1024} lds")
        a(f"""
        s_add_u32 s{S_WOF}, s{S_WOF}, {64*6144}
        s_add_u32 s{S_SLOT}, s{S_SLOT}, {K1_STAGE}
        s_cmp_eq_u32 s{S_SLOT}, {4*K1_STAGE}
        s_cselect_b32 s{S_SLOT}, 0, s{S_SLOT}
        """)
    PER = 10 - (4 if "nox" in OPT else 0) - (6 if "now" in OPT else 0)
    issue_x()
    a(f"""
    s_lshl_b32 s{T1}, s{S_HP}, 7
    s_add_u32 s{SRD_W}, s{S_WQ}, s{T1}
    s_addc_u32 s{SRD_W+1}, s{S_WQ+1}, 0
    s_and_b32 s{SRD_W+1}, s{SRD_W+1}, 0xffff
    s_sub_u32 s{SRD_W+2}, {1024*6144}, s{T1}
    s_mov_b32 s{SRD_W+3}, 0x20000
    v_lshrrev_b32 v2, 2, v0
    v_lshrrev_b32 v3, 4, v0
    v_xor_b32 v2, v2, v3
    v_and_b32 v2, 1, v2              ; hh
    v_lshlrev_b32 v2, 6, v2
    v_and_b32 v3, 3, v0
    v_lshlrev_b32 v3, 4, v3
    v_add_u32 v2, v2, v3             ; hh*64 + (l&3)*16
    v_mul_u32_u24 v3, 6144, v1       ; (l>>3)*6144
    v_add_u32 v2, v2, v3
    s_mul_i32 s{T1}, s{T0}, 6
    """)
    for n in range(6):
        a(f"""
        s_add_u32 s{T2}, s{T1}, {n}
        s_lshr_b32 s{T3}, s{T2}, 3
        s_and_b32 s{T2}, s{T2}, 7
        s_mul_i32 s{T2}, s{T2}, {8*6144}
        s_lshl_b32 s{T3}, s{T3}, 11
        s_add_u32 s{T2}, s{T2}, s{T3}
        s_sub_u32 s{T2}, s{T2}, {(n if n < 4 else n-4)*1024}
        v_add_u32 v{10+n}, s{T2}, v2
        """)
    a(f"""
    v_mov_b32 v18, 0
    s_mul_i32 s{S_WL2}, s{T0}, 6144
    s_add_u32 s{S_WL2}, s{S_WL2}, 16384
    s_mov_b32 s{S_WOF}, 0
    """)
    issue_w()
    NINIT = int(optval("ninit", 4))
    for i_ in range(NINIT - 1):
        if "ord" in OPT: a("s_barrier")
        if "probe" in OPT and i_ + 1 >= int(optval("nst", 4)): continue
        issue_x(); issue_w()
    PFA, PFB, PFC = [int(x) for x in optval("pfat", "0,1,3").split(",")]
    S_PF0, S_PF1, S_PB0, S_PB1 = 62, 63, 88, 90
    if "pf2" in OPT:
        a(f"""
        s_and_b32 s{T1}, s2, 7            ; xcd
        s_lshr_b32 s{T2}, s2, 3           ; loc
        s_and_b32 s{T3}, s{T1}, 1         ; b
        s_lshr_b32 s{T1}, s{T1}, 1        ; a
        v_lshrrev_b32 v20, 2, v0
        v_add_u32 v21, -4, v20
        v_cmp_lt_u32 vcc, 11, v20
        s_lshl_b32 s{T4}, s{T3}, 5
        s_add_u32 s{T4}, s{T4}, s{T2}
        s_mul_i32 s{T4}, s{T4}, 12
        v_cndmask_b32 v20, v20, v21, vcc
        v_add_u32 v20, s{T4}, v20
        v_lshlrev_b32 v20, 11, v20
        v_and_b32 v21, 3, v0
        v_lshlrev_b32 v21, 7, v21
        v_add_u32 v20, v20, v21
        s_lshl_b32 s{T4}, s{T1}, 9
        v_add_u32 v20, s{T4}, v20          ; W G0 address
        s_lshl_b32 s{T4}, s{T3}, 10
        s_lshl_b32 s{T5}, s{T1}, 8
        s_add_u32 s{T4}, s{T4}, s{T5}
        s_lshl_b32 s{T5}, s{T2}, 3
        s_add_u32 s{T4}, s{T4}, s{T5}
        v_lshrrev_b32 v22, 3, v0
        v_add_u32 v22, s{T4}, v22
        v_lshlrev_b32 v22, 11, v22
        v_and_b32 v23, 7, v0
        v_lshlrev_b32 v23, 7, v23
        v_add_u32 v23, v22, v23
        v_add_u32 v23, 512, v23            ; cols 4..11
        v_and_b32 v21, 3, v0
        v_lshlrev_b32 v21, 7, v21
        v_add_u32 v22, v22, v21
        v_add_u32 v22, 1536, v22           ; cols 12..15
        s_cmp_eq_u32 s{T0}, 1              ; q == 1 : x
        s_cbranch_scc1 PF2_X
        ; W waves: q0: G1 / G3 ; q2: G2
        s_mov_b32 s{S_PB0}, s{S_WQ}
        s_mov_b32 s{S_PB0+1}, s{S_WQ+1}
        s_cmp_eq_u32 s{T0}, 0
        s_mov_b32 s{T5}, {768*2048}
        s_cselect_b32 s{T4}, s{T5}, {2*768*2048}
        s_cselect_b32 s{S_PF0}, {PFA}, {PFB}
        s_cselect_b32 s{S_PF1}, {PFC}, 99
        s_cmp_eq_u32 s{T0}, 3
        s_cselect_b32 s{S_PF0}, 99, s{S_PF0}
        v_add_u32 v24, s{T4}, v20
        v_add_u32 v25, {3*768*2048}, v20
        s_branch PF2_DONE
        PF2_X:
        s_mov_b32 s{S_PB0}, s{S_X}
        s_mov_b32 s{S_PB0+1}, s{S_X+1}
        s_mov_b32 s{S_PF0}, {PFA}
        s_mov_b32 s{S_PF1}, {PFC}
        v_mov_b32 v24, v23
        v_mov_b32 v25, v22
        PF2_DONE:
        """)
    if "probe" in OPT:
        stamp(a, 1)
        for i, n in enumerate((36 if "nox" not in OPT and "now" not in OPT else 3*PER+PER//2, 3*PER, 2*PER, PER, 0)):
            a(f"s_waitcnt vmcnt({n})"); stamp(a, 2 + i)
        a("s_branch FINSTAMP")
    a(f"""
    s_cmp_lg_u32 s2, 0
    s_cbranch_scc1 P1_NONON
    s_cmp_lg_u32 s{S_W}, 7
    s_cbranch_scc1 P1_NONON
    s_memrealtime s[{S_NON}:{S_NON+1}]
    s_waitcnt lgkmcnt(0)
    s_or_b32 s{S_NON}, s{S_NON}, 1
    v_mov_b32 v16, s{S_NON}
    v_mov_b32 v17, s{S_NON+1}
    global_store_dwordx2 v18, v[16:17], s[{S_DBG}:{S_DBG+1}] sc1
    P1_NONON:
    {f"s_waitcnt vmcnt({3*PER})" if NINIT == 4 else ""}
    {"s_barrier" if NINIT == 4 else ""}
    s_mov_b32 s{S_B}, {1 if NINIT == 4 else 0}
    P1_LLOOP:
    s_waitcnt vmcnt({2*PER})
    s_barrier
    """)
    issue_x(); issue_w()
    if "pf2" in OPT:
        a(f"""
        s_cmp_lg_u32 s{S_B}, s{S_PF0}
        s_cbranch_scc1 PF2_N0
        global_load_dword v26, v24, s[{S_PB0}:{S_PB0+1}]
        PF2_N0:
        s_cmp_lg_u32 s{S_B}, s{S_PF1}
        s_cbranch_scc1 PF2_N1
        global_load_dword v27, v25, s[{S_PB0}:{S_PB0+1}]
        PF2_N1:
        """)
    a(f"""
    s_cmp_lg_u32 s{S_B}, 8
    s_cbranch_scc1 P1_NONSKIP
    global_load_dwordx2 v[16:17], v18, s[{S_DBG}:{S_DBG+1}] sc1
    P1_NONSKIP:
    s_add_u32 s{S_B}, s{S_B}, 1
    s_cmp_lt_u32 s{S_B}, 13
    s_cbranch_scc1 P1_LLOOP
    s_waitcnt vmcnt({2*PER})
    s_barrier
    s_waitcnt vmcnt({PER})
    s_barrier
    s_waitcnt vmcnt(0)
    s_barrier
    s_mov_b32 s{SRD_WS}, s{S_WS}
    s_and_b32 s{SRD_WS+1}, s{S_WS+1}, 0xffff
    s_mov_b32 s{SRD_WS+2}, {WS_SIZE}
    s_mov_b32 s{SRD_WS+3}, 0x20000
    s_and_b32 s{S_HH}, s{S_W}, 1
    s_lshr_b32 s{S_TH}, s{S_W}, 1
    s_and_b32 s{S_TH}, s{S_TH}, 1
    v_lshlrev_b32 v3, 4, v0
    s_cmp_lg_u32 s{S_W}, 7
    s_cbranch_scc1 P1_NONDONE
    s_mov_b32 s{S_SPIN}, 0
    P1_NONPOLL:
    v_readfirstlane_b32 s{S_NON}, v16
    v_readfirstlane_b32 s{S_NON+1}, v17
    s_add_u32 s{S_SPIN}, s{S_SPIN}, 1
    s_cmp_ge_u32 s{S_SPIN}, {SPIN_MAX}
    s_cbranch_scc1 P1_NONDONE
    s_cmp_eq_u32 s{S_NON}, 0
    s_cbranch_scc0 P1_NONDONE
    s_sleep 2
    global_load_dwordx2 v[16:17], v18, s[{S_DBG}:{S_DBG+1}] sc1
    s_waitcnt vmcnt(0)
    s_branch P1_NONPOLL
    P1_NONDONE:
    s_barrier
    """)
    Q = 4; CM = 16; SA, SB = 32, 48; P = 64; KF = 72; VF = 80; L = 88; ONES = 92; O = 96
    VCUR, VNXT, VL16 = 1, 2, 3
    VD = 112
    VW = 116
    QXA = 120
    a("P2_START:")
    if "p1only" in OPT: a("s_waitcnt vmcnt(0) lgkmcnt(0)\ns_branch FINSTAMP")
    a(f"""
    s_lshl_b32 s{T0}, s{S_CG}, 7
    s_add_u32 s{SRD_WO}, s{S_WO}, s{T0}
    s_addc_u32 s{SRD_WO+1}, s{S_WO+1}, 0
    s_and_b32 s{SRD_WO+1}, s{SRD_WO+1}, 0xffff
    s_sub_u32 s{SRD_WO+2}, {1024*2048}, s{T0}
    s_mov_b32 s{SRD_WO+3}, 0x20000
    s_mov_b32 s{SRD_D}, s{SRD_WS}
    s_mov_b32 s{SRD_D+1}, s{SRD_WS+1}
    s_mov_b32 s{SRD_D+2}, s{SRD_WS+2}
    s_mov_b32 s{SRD_D+3}, s{SRD_WS+3}
    v_lshrrev_b32 v{VW}, 3, v0
    v_lshrrev_b32 v{VW+1}, 2, v0
    v_lshrrev_b32 v{VW+2}, 4, v0
    v_xor_b32 v{VW+1}, v{VW+1}, v{VW+2}
    v_and_b32 v{VW+1}, 1, v{VW+1}
    v_lshlrev_b32 v{VW+1}, 6, v{VW+1}
    v_and_b32 v{VW+2}, 3, v0
    v_lshlrev_b32 v{VW+2}, 4, v{VW+2}
    v_add_u32 v{VW+1}, v{VW+1}, v{VW+2}
    s_lshl_b32 s{T0}, s{S_W}, 5
    v_add_u32 v{VW}, s{T0}, v{VW}
    v_lshlrev_b32 v{VW}, 11, v{VW}
    v_add_u32 v{VW}, v{VW}, v{VW+1}
    v_add_u32 v{VW+1}, {16384-1024}, v{VW}
    v_add_u32 v{VW+2}, {32768-2048}, v{VW}
    v_add_u32 v{VW+3}, {49152-3072}, v{VW}
    v_mov_b32 v{VD}, v{VL16}
    v_mov_b32 v{VD+1}, v{VL16}
    v_mov_b32 v{VD+2}, v{VL16}
    v_mov_b32 v{VD+3}, v{VL16}
    s_lshr_b32 s{T0}, s{S_W}, 2
    s_lshl_b32 s{T1}, s{S_HP}, 1
    s_add_u32 s{T1}, s{T1}, s{T0}
    s_lshl_b32 s{T1}, s{T1}, 18
    s_and_b32 s{T2}, s{S_W}, 3
    s_lshl_b32 s{T2}, s{T2}, 12
    s_add_u32 s{S_BASE}, s{T1}, s{T2}
    s_lshl_b32 s{S_WL}, s{S_W}, 12
    s_mov_b32 s{S_STEP}, 16384
    s_mov_b32 s{S_IDX}, s{S_TB}
    s_lshl_b32 s{T0}, s{S_HH}, 14
    v_add_u32 v{VCUR}, s{T0}, v{VL16}
    s_and_b32 s{T0}, s{S_W}, 3
    s_lshl_b32 s{T0}, s{T0}, 11
    s_add_u32 s{T0}, s{T0}, {QX}
    v_add_u32 v{QXA}, s{T0}, v{VL16}
    v_lshrrev_b32 v{ONES}, 2, v0
    v_lshrrev_b32 v{ONES+1}, 4, v0
    v_xor_b32 v{ONES}, v{ONES}, v{ONES+1}
    v_and_b32 v{ONES}, 1, v{ONES}
    v_cmp_eq_u32 vcc, 0, v{ONES}
    v_mov_b32 v{ONES+1}, 0x3f803f80
    s_nop 0
    v_cndmask_b32 v{ONES}, 0, v{ONES+1}, vcc
    s_nop 0
    v_mov_b32 v{ONES+1}, v{ONES}
    v_mov_b32 v{ONES+2}, v{ONES}
    v_mov_b32 v{ONES+3}, v{ONES}
    s_waitcnt lgkmcnt(0)
    s_barrier
    """)
    stamp(a, 3)
    a(f"""
    s_add_u32 m0, s{S_WL}, 131072
    s_cmp_lt_u32 s{S_W}, 4
    s_cbranch_scc1 P2_NOQ
    ds_read_b128 {vr(Q,4)}, v{QXA}
    ds_read_b128 {vr(Q+4,4)}, v{QXA} offset:1024
    P2_NOQ:
    ds_read_b128 {vr(KF,4)}, v{VCUR}
    ds_read_b128 {vr(KF+4,4)}, v{VCUR} offset:1024
    """)
    for n in range(4):
        a(f"buffer_load_dwordx4 v{VW+n}, s[{SRD_WO}:{SRD_WO+3}], 0 offen offset:{n*1024} lds")
    for r in range(16): a(f"v_mov_b32 v{O+r}, 0")
    for r in range(4): a(f"v_mov_b32 v{L+r}, 0")
    for r in range(8): a(f"v_mov_b32 v{P+r}, 0")
    for r in range(8): a(f"v_mov_b32 v{VF+r}, 0")
    a(f"""
    s_waitcnt lgkmcnt(0)
    v_mfma_f32_32x32x16_bf16 {vr(SA,16)}, {vr(KF,4)}, {vr(Q,4)}, 0
    v_mfma_f32_32x32x16_bf16 {vr(SA,16)}, {vr(KF+4,4)}, {vr(Q+4,4)}, {vr(SA,16)}
    s_nop 15
    """)
    a(f"v_max3_f32 v{CM}, v{SA}, v{SA+1}, v{SA+2}")
    for i in range(3, 15, 2):
        a(f"v_max3_f32 v{CM}, v{CM}, v{SA+i}, v{SA+i+1}")
    a(f"""
    v_max_f32 v{CM}, v{CM}, v{SA+15}
    v_mov_b32 v{CM+1}, v{CM}
    s_nop 1
    v_permlane32_swap_b32 v{CM}, v{CM+1}
    s_nop 1
    v_max_f32 v{CM}, v{CM}, v{CM+1}
    v_sub_f32 v{CM}, 0, v{CM}
    """)
    for i in range(1, 16): a(f"v_mov_b32 v{CM+i}, v{CM}")
    a(f"""
    s_nop 1
    v_mfma_f32_32x32x16_bf16 {vr(SA,16)}, {vr(KF,4)}, {vr(Q,4)}, {vr(CM,16)}
    v_mfma_f32_32x32x16_bf16 {vr(SA,16)}, {vr(KF+4,4)}, {vr(Q+4,4)}, {vr(SA,16)}
    s_mov_b32 s{S_C}, 0
    s_mov_b32 s{S_MASK}, 0x8000
    s_nop 13
    """)
    def exps(sa, lo, hi):
        for i in range(lo, hi): a(f"v_exp_f32 v{sa+i}, v{sa+i}")
    def cvts(sa, lo, hi):
        for i in range(lo, hi): a(f"v_cvt_pk_bf16_f32 v{P+i}, v{sa+2*i}, v{sa+2*i+1}")
    def QK0(sb): a(f"v_mfma_f32_32x32x16_bf16 {vr(sb,16)}, {vr(KF,4)}, {vr(Q,4)}, {vr(CM,16)}")
    def QK1(sb): a(f"v_mfma_f32_32x32x16_bf16 {vr(sb,16)}, {vr(KF+4,4)}, {vr(Q+4,4)}, {vr(sb,16)}")
    def PV0(): a(f"v_mfma_f32_32x32x16_bf16 {vr(O,16)}, {vr(VF,4)}, {vr(P,4)}, {vr(O,16)}")
    def PV1(): a(f"v_mfma_f32_32x32x16_bf16 {vr(O,16)}, {vr(VF+4,4)}, {vr(P+4,4)}, {vr(O,16)}")
    def SM0(): a(f"v_mfma_f32_16x16x32_bf16 {vr(L,4)}, {vr(ONES,4)}, {vr(P,4)}, {vr(L,4)}")
    def SM1(): a(f"v_mfma_f32_16x16x32_bf16 {vr(L,4)}, {vr(ONES,4)}, {vr(P+4,4)}, {vr(L,4)}")
    def readK(reg, off):
        a(f"ds_read_b128 {vr(KF,4)}, v{reg} offset:{off}\nds_read_b128 {vr(KF+4,4)}, v{reg} offset:{off+1024}")
    def readV(u):
        a(f"ds_read_b128 {vr(VF,4)}, v{VCUR} offset:{u*4096+2048}\nds_read_b128 {vr(VF+4,4)}, v{VCUR} offset:{u*4096+3072}")
    def piece(n, inloop=False):
        if inloop and "nopiece" in OPT: return
        sc = "" if "nosc1" in OPT else " sc1"
        a(f"buffer_load_dwordx4 v{VD+n}, s[{SRD_D}:{SRD_D+3}], s{S_SOFF} offen offset:{n*1024}{sc} lds")
    def next_chunk_params():
        a(f"""
        s_add_u32 s{S_IDX}, s{S_IDX}, 1
        s_and_b32 s{S_IDX}, s{S_IDX}, 15
        s_mul_i32 s{S_SOFF}, s{S_IDX}, s{S_STEP}
        s_add_u32 s{S_SOFF}, s{S_SOFF}, s{S_BASE}
        """)
    def set_m0_for(creg_or_const, add, const=True):
        if const:
            c = (creg_or_const + add) & 3
            g = c ^ (c >> 1)
            a(f"s_add_u32 m0, s{S_WL}, {g*32768}")
        else:
            a(f"""
            s_add_u32 s{T0}, s{creg_or_const}, {add}
            s_and_b32 s{T0}, s{T0}, 3
            s_lshr_b32 s{T1}, s{T0}, 1
            s_xor_b32 s{T0}, s{T0}, s{T1}
            s_lshl_b32 s{T0}, s{T0}, 15
            s_add_u32 m0, s{T0}, s{S_WL}
            """)
    def E(sa, i): return f"v_exp_f32 v{sa+i}, v{sa+i}"
    def C(sa, i): return f"v_cvt_pk_bf16_f32 v{P+i}, v{sa+2*i}, v{sa+2*i+1}"
    def cap(f, *args):
        n = len(a.l); f(*args); r = a.l[n:]; del a.l[n:]; return [x.strip() for x in r]
    def kreads(reg, off):
        return [f"ds_read_b128 {vr(KF,4)}, v{reg} offset:{off}", f"ds_read_b128 {vr(KF+4,4)}, v{reg} offset:{off+1024}"]
    def vreads(u):
        return [f"ds_read_b128 {vr(VF,4)}, v{VCUR} offset:{u*4096+2048}", f"ds_read_b128 {vr(VF+4,4)}, v{VCUR} offset:{u*4096+3072}"]
    SWBLK = []
    def tile(u, first):
        sa, sb = (SA, SB) if u % 2 == 0 else (SB, SA)
        pv0 = cap(PV0)[0]; pv1 = cap(PV1)[0]; sm0 = cap(SM0)[0]; sm1 = cap(SM1)[0]
        qk0 = cap(QK0, sb)[0]; qk1 = cap(QK1, sb)[0]
        slot = {}
        def put(key, ins): slot.setdefault(key, []).append(ins)
        def emit(ins, key):
            a(ins)
            for x in slot.pop(key, []): a(x)
        dopiece = (first and u == 3) or (not first and "nopiece" not in OPT)
        pc = cap(piece, (u + 1) % 4)[0]
        if u < 3:
            if not first and dopiece: put("pv0", pc)
            kr = kreads(VCUR, (u + 1) * 4096)
            put("e0", kr[0]); put("e1", kr[1])
        if u == 2 and not first:
            put("e2", f"s_cmp_eq_u32 s{S_C}, 13")
            put("e3", f"s_cbranch_scc1 P2_SW")
            put("e3", "P2_SWBACK:")
            put("sm0", f"s_add_u32 s{S_IDX}, s{S_IDX}, 1")
            put("e4", f"s_and_b32 s{S_IDX}, s{S_IDX}, 15")
            put("e5", f"s_xor_b32 m0, m0, s{S_MASK}")
            put("e8", f"s_mul_i32 s{S_SOFF}, s{S_IDX}, s{S_STEP}")
            put("e9", f"s_add_u32 s{S_SOFF}, s{S_SOFF}, s{S_BASE}")
        vrd = vreads(u)
        put("pv1", vrd[0]); put("e6", vrd[1])
        if u == 3:
            kr = kreads(VNXT, 0)
            put("e4", kr[0]); put("e5", kr[1])
            if dopiece: put("e8", pc)
            put("e9", f"s_xor_b32 s{S_MASK}, s{S_MASK}, 0x18000")
            put("sm1", f"s_add_u32 s{S_C}, s{S_C}, 1")
            if not first: put("e13", f"s_cmp_lt_u32 s{S_C}, 16")
        put("e11", "s_waitcnt lgkmcnt(2)")
        put("qk1", "s_waitcnt lgkmcnt(0)")
        if "noprio" not in OPT: put("e15", f"s_setprio {3 - (u + 1) % 4}")
        emit(pv0, "pv0")
        for i in range(4): emit(E(sa, i), f"e{i}")
        emit(sm0, "sm0")
        if first and u == 2: X0()
        if u == 3:
            if first: X1()
            if first or "nobar2" not in OPT:
                a("s_waitcnt vmcnt(4)\ns_barrier")
            if first:
                stamp(a, 6)
                next_chunk_params(); set_m0_for(3, 0)
        emit(E(sa, 4), "e4"); emit(E(sa, 5), "e5")
        emit(pv1, "pv1")
        for i in range(6, 10): emit(E(sa, i), f"e{i}")
        emit(sm1, "sm1")
        emit(E(sa, 10), "e10"); emit(E(sa, 11), "e11")
        emit(qk0, "qk0")
        for i in range(12, 16): emit(E(sa, i), f"e{i}")
        emit(qk1, "qk1")
        assert not slot, slot
        for i in range(8):
            a(C(sa, i))
            if u == 2 and i == 3: a(f"v_xor_b32 v{VNXT}, s{S_MASK}, v{VCUR}")
            if u == 3 and i == 3: a(f"v_mov_b32 v{VCUR}, v{VNXT}")
    def X0():
        a(f"""
        s_waitcnt vmcnt(4)
        s_barrier
        """)
        stamp(a, 4)
        a(f"""
        s_cmp_lg_u32 s{S_W}, 7
        s_cbranch_scc1 P2_NOFLAG
        s_lshl_b32 s{T0}, s{S_HP}, 7
        s_lshl_b32 s{T1}, s{S_TB}, 3
        s_add_u32 s{T0}, s{T0}, s{T1}
        s_add_u32 s{T0}, s{T0}, {WS_F1}
        v_mov_b32 v122, s{S_NON}
        v_mov_b32 v123, s{S_NON+1}
        v_mov_b32 v124, 0
        s_mov_b64 s[{S_EX}:{S_EX+1}], exec
        s_mov_b64 exec, 1
        buffer_store_dwordx2 v[122:123], v124, s[{SRD_WS}:{SRD_WS+3}], s{T0} offen sc1
        s_mov_b64 exec, s[{S_EX}:{S_EX+1}]
        P2_NOFLAG:
        """)
    def X1():
        a(f"""
        s_cmp_lg_u32 s{S_W}, 7
        s_cbranch_scc1 P2_NOPOLL
        s_lshl_b32 s{T0}, s{S_HP}, 7
        s_add_u32 s{T0}, s{T0}, {WS_F1}
        v_and_b32 v124, 15, v0
        v_lshlrev_b32 v124, 3, v124
        s_mov_b32 s{S_SPIN}, 0
        P2_POLL:
        buffer_load_dwordx2 v[122:123], v124, s[{SRD_WS}:{SRD_WS+3}], s{T0} offen sc1
        s_waitcnt vmcnt(0)
        v_cmp_ne_u32 vcc, s{S_NON}, v122
        v_cmp_ne_u32 s[{S_EX}:{S_EX+1}], s{S_NON+1}, v123
        s_nop 1
        s_or_b64 vcc, vcc, s[{S_EX}:{S_EX+1}]
        s_add_u32 s{S_SPIN}, s{S_SPIN}, 1
        s_cmp_ge_u32 s{S_SPIN}, {SPIN_MAX}
        s_cbranch_scc1 P2_NOPOLL
        s_cmp_eq_u64 vcc, 0
        s_cbranch_scc1 P2_NOPOLL
        s_sleep 1
        s_branch P2_POLL
        P2_NOPOLL:
        s_barrier
        """)
        stamp(a, 5)
        for cl in (1, 2):
            next_chunk_params()
            set_m0_for(cl, 0)
            a("s_nop 0")
            for n in range(4): piece(n)
    def chunk_end():
        if STAMP and "cs" in OPT:
            a(f"s_memtime s[98:99]\ns_waitcnt lgkmcnt(0)\nv_mov_b32 v127, s98\ns_sub_u32 s99, s{S_C}, 1\nv_cmp_eq_u32 vcc, s99, v0\ns_nop 1\nv_cndmask_b32 v126, v126, v127, vcc")
            a(f"s_cmp_lt_u32 s{S_C}, 16")
    a("s_setprio 3")
    a("ds_read_b128 v[124:127], v3\nds_read_b128 v[124:127], v3" if False else "")
    for u in range(4): tile(u, True)
    chunk_end()
    if "al64" in OPT: a.l.append(".p2align 6")
    if "al4" in OPT: a.l.append(".p2align 6"); a("s_nop 0")
    a("P2_LOOP:")
    for u in range(4): tile(u, False)
    chunk_end()
    a(f"""
    s_cbranch_scc1 P2_LOOP
    s_setprio 0
    """)
    stamp(a, 7)
    a("s_waitcnt lgkmcnt(0)\ns_nop 1"); PV0(); SM0(); PV1(); SM1()
    a("s_nop 15")
    Z = 122
    a(f"v_fma_f32 v{Z}, v{L}, 0, 0")
    for r in range(16): a(f"v_fma_f32 v{Z}, v{O+r}, 0, v{Z}")
    a(f"""
    v_cmp_u_f32 vcc, v{Z}, v{Z}
    s_nop 4
    s_cbranch_vccnz P2_SLOW
    P2_NORM:
    v_rcp_f32 v{L+1}, v{L}
    s_nop 0
    """)
    for r in range(16): a(f"v_mul_f32 v{O+r}, v{O+r}, v{L+1}")
    for i in range(8): a(f"v_cvt_pk_bf16_f32 v{P+i}, v{O+2*i}, v{O+2*i+1}")
    a(f"""
    s_lshl_b32 s{T0}, s{S_TB}, 2
    s_lshl_b32 s{T1}, s{S_TH}, 1
    s_add_u32 s{T0}, s{T0}, s{T1}
    s_lshr_b32 s{T1}, s{S_W}, 2
    s_add_u32 s{T0}, s{T0}, s{T1}
    s_lshl_b32 s{T1}, s{S_HP}, 1
    s_add_u32 s{T1}, s{T1}, s{S_HH}
    s_lshl_b32 s{T0}, s{T0}, 16
    s_lshl_b32 s{T1}, s{T1}, 11
    s_add_u32 s{T0}, s{T0}, s{T1}
    s_add_u32 s{T0}, s{T0}, {WS_O}
    buffer_store_dwordx4 {vr(P,4)}, v{VL16}, s[{SRD_WS}:{SRD_WS+3}], s{T0} offen sc1
    buffer_store_dwordx4 {vr(P+4,4)}, v{VL16}, s[{SRD_WS}:{SRD_WS+3}], s{T0} offen offset:1024 sc1
    """)
    for n in (1, 2, 3): piece(n)
    OB = 128; ACC3 = 16; WF = [48, 56]; VT0, VT1 = 4, 5
    a(f"""
    v_lshrrev_b32 v6, 2, v0
    v_and_b32 v6, 3, v6              ; r
    v_lshrrev_b32 v7, 5, v0          ; h
    v_lshlrev_b32 v7, 2, v7
    v_add_u32 v7, v7, v6
    v_lshlrev_b32 v7, 7, v7          ; (4h+r)*128
    v_lshrrev_b32 v6, 1, v6
    v_lshlrev_b32 v6, 6, v6
    v_add_u32 v7, v7, v6
    v_lshrrev_b32 v6, 4, v0
    v_and_b32 v6, 1, v6
    v_lshlrev_b32 v6, 5, v6
    v_add_u32 v7, v7, v6
    v_and_b32 v6, 3, v0
    v_lshlrev_b32 v6, 3, v6
    v_add_u32 v7, v7, v6
    s_lshr_b32 s{T2}, s{S_W}, 2
    s_mov_b32 s{T3}, 32768
    s_mov_b32 s{T4}, {98304 - 32768}
    s_cmp_eq_u32 s{T2}, 0
    s_cselect_b32 s{T3}, 131072, s{T3}
    s_cselect_b32 s{T4}, {(0 - 131072) & 0xffffffff}, s{T4}
    v_add_u32 v{VT0}, s{T3}, v7
    v_xor_b32 v{VT1}, 64, v{VT0}
    """)
    for r in range(32): a(f"v_mov_b32 v{ACC3+r}, 0")
    a(f"""
    s_waitcnt vmcnt(3)
    s_barrier
    """)
    stamp(a, 8)
    a(f"""
    s_cmp_lg_u32 s{S_W}, 7
    s_cbranch_scc1 P3_NOPOLL
    s_lshl_b32 s{T0}, s{S_TB}, 7
    s_lshl_b32 s{T1}, s{S_HP}, 3
    s_add_u32 s{T0}, s{T0}, s{T1}
    s_add_u32 s{T0}, s{T0}, {WS_F2}
    v_mov_b32 v122, s{S_NON}
    v_mov_b32 v123, s{S_NON+1}
    v_mov_b32 v124, 0
    s_mov_b64 s[{S_EX}:{S_EX+1}], exec
    s_mov_b64 exec, 1
    buffer_store_dwordx2 v[122:123], v124, s[{SRD_WS}:{SRD_WS+3}], s{T0} offen sc1
    s_mov_b64 exec, s[{S_EX}:{S_EX+1}]
    s_lshl_b32 s{T0}, s{S_TB3}, 7
    s_add_u32 s{T0}, s{T0}, {WS_F2}
    v_and_b32 v124, 15, v0
    v_lshlrev_b32 v124, 3, v124
    s_mov_b32 s{S_SPIN}, 0
    P3_POLL:
    buffer_load_dwordx2 v[122:123], v124, s[{SRD_WS}:{SRD_WS+3}], s{T0} offen sc1
    s_waitcnt vmcnt(0)
    v_cmp_ne_u32 vcc, s{S_NON}, v122
    v_cmp_ne_u32 s[{S_EX}:{S_EX+1}], s{S_NON+1}, v123
    s_nop 1
    s_or_b64 vcc, vcc, s[{S_EX}:{S_EX+1}]
    s_add_u32 s{S_SPIN}, s{S_SPIN}, 1
    s_cmp_ge_u32 s{S_SPIN}, {SPIN_MAX}
    s_cbranch_scc1 P3_NOPOLL
    s_cmp_eq_u64 vcc, 0
    s_cbranch_scc1 P3_NOPOLL
    s_sleep 1
    s_branch P3_POLL
    P3_NOPOLL:
    s_waitcnt vmcnt(0)
    s_barrier
    """)
    stamp(a, 9)
    a(f"""
    s_lshl_b32 s{T0}, s{S_TB3}, 2
    s_and_b32 s{T1}, s{S_W}, 3
    s_add_u32 s{T0}, s{T0}, s{T1}        ; T
    s_lshl_b32 s{T1}, s{T0}, 16
    s_lshl_b32 s{T2}, s{T2}, 15
    s_add_u32 s{T1}, s{T1}, s{T2}
    s_add_u32 s{T1}, s{T1}, {WS_O}
    """)
    for i in range(32):
        a(f"buffer_load_dwordx4 {vr(OB+4*i,4)}, v{VL16}, s[{SRD_WS}:{SRD_WS+3}], s{T1} offen offset:{(i%4)*1024} sc1")
        if i % 4 == 3 and i < 31: a(f"s_add_u32 s{T1}, s{T1}, 4096")
    def wread(j, buf):
        jj = j % 16
        for ct, vt in ((0, VT0), (1, VT1)):
            for e in range(2):
                a(f"ds_read_b64_tr_b16 {vr(WF[buf]+4*ct+2*e,2)}, v{vt} offset:{jj*2048+e*1024}")
    wread(0, 0)
    for j in range(32):
        if j + 1 < 32:
            if j + 1 == 16:
                a(f"v_add_u32 v{VT0}, s{T4}, v{VT0}\nv_add_u32 v{VT1}, s{T4}, v{VT1}")
            wread(j + 1, (j + 1) % 2)
            a(f"s_waitcnt vmcnt({31-j}) lgkmcnt(4)")
        else:
            a(f"s_waitcnt vmcnt(0) lgkmcnt(0)")
        for ct in range(2):
            a(f"v_mfma_f32_32x32x16_bf16 {vr(ACC3+16*ct,16)}, {vr(WF[j%2]+4*ct,4)}, {vr(OB+4*j,4)}, {vr(ACC3+16*ct,16)}")
    stamp(a, 10)
    RED = 65536
    a(f"""
    s_lshl_b32 s{T1}, s{S_W}, 12
    s_add_u32 s{T1}, s{T1}, {RED}
    v_add_u32 v6, s{T1}, v{VL16}
    s_xor_b32 s{T2}, s{S_W}, 4
    s_lshl_b32 s{T2}, s{T2}, 12
    s_add_u32 s{T2}, s{T2}, {RED}
    v_add_u32 v7, s{T2}, v{VL16}
    s_mov_b32 s{SRD_OUT}, s{S_OUT}
    s_and_b32 s{SRD_OUT+1}, s{S_OUT+1}, 0xffff
    s_mov_b32 s{SRD_OUT+2}, {2048*1024*2}
    s_mov_b32 s{SRD_OUT+3}, 0x20000
    v_and_b32 v1, 31, v0
    s_lshl_b32 s{T0}, s{T0}, 5
    v_add_u32 v1, s{T0}, v1
    v_lshlrev_b32 v1, 11, v1
    v_lshrrev_b32 v2, 5, v0
    v_lshlrev_b32 v2, 4, v2
    v_add_u32 v1, v1, v2
    s_lshr_b32 s{T3}, s{S_W}, 2
    s_lshl_b32 s{T4}, s{S_CG}, 7
    s_lshl_b32 s{T5}, s{T3}, 6
    s_add_u32 s{T4}, s{T4}, s{T5}
    v_add_u32 v1, s{T4}, v1
    s_cmp_eq_u32 s{T3}, 0
    s_cbranch_scc1 P3_KH0
    """)
    def red(send, keep):
        a("s_nop 4")
        for i in range(4): a(f"ds_write_b128 v6, {vr(send+4*i,4)} offset:{1024*i}")
        a("s_waitcnt lgkmcnt(0)\ns_barrier")
        for i in range(4): a(f"ds_read_b128 {vr(64+4*i,4)}, v7 offset:{1024*i}")
        a("s_waitcnt lgkmcnt(0)")
        for r in range(16): a(f"v_add_f32 v{64+r}, v{64+r}, v{keep+r}")
    red(ACC3, ACC3 + 16)
    a("s_branch P3_FIN")
    a("P3_KH0:")
    red(ACC3 + 16, ACC3)
    a("P3_FIN:")
    for i in range(8): a(f"v_cvt_pk_bf16_f32 v{80+i}, v{64+2*i}, v{64+2*i+1}")
    a(f"""
    s_nop 1
    v_permlane32_swap_b32 v80, v82
    v_permlane32_swap_b32 v81, v83
    v_permlane32_swap_b32 v84, v86
    v_permlane32_swap_b32 v85, v87
    s_nop 1
    buffer_store_dwordx4 v[80:83], v1, s[{SRD_OUT}:{SRD_OUT+3}], 0 offen
    buffer_store_dwordx4 v[84:87], v1, s[{SRD_OUT}:{SRD_OUT+3}], 0 offen offset:32
    """)
    if STAMP:
        a("FINSTAMP:")
        if "cs1" in OPT: a("v_mov_b32 v126, v204")
        stamp(a, 11)
        a(f"""
        s_memrealtime s[98:99]
        s_waitcnt lgkmcnt(0)
        s_lshl_b32 s{T0}, s2, 3
        s_add_u32 s{T0}, s{T0}, s{S_W}
        s_lshl_b32 s{T0}, s{T0}, 6
        s_add_u32 s{T0}, s{T0}, {STAMP_OFF}
        v_mov_b32 v1, s{T0}
        v_cmp_eq_u32 vcc, 0, v0
        s_and_saveexec_b64 s[{S_EX}:{S_EX+1}], vcc
        v_mov_b32 v4, s96
        v_mov_b32 v5, s98
        v_mov_b32 v6, s{S_SPIN}
        v_mov_b32 v7, 0
        global_store_dwordx4 v1, v[4:7], s[{S_WS}:{S_WS+1}]
        """)
        for g in range(3):
            for i in range(4): a(f"v_mov_b32 v{4+i}, s{ST0+4*g+i}")
            a(f"global_store_dwordx4 v1, v[4:7], s[{S_WS}:{S_WS+1}] offset:{16+16*g}")
        a(f"""
        s_mov_b64 exec, -1
        s_lshl_b32 s{T0}, s2, 3
        s_add_u32 s{T0}, s{T0}, s{S_W}
        s_lshl_b32 s{T0}, s{T0}, 8
        s_add_u32 s{T0}, s{T0}, {STAMP_OFF + (1 << 20)}
        v_lshlrev_b32 v1, 2, v0
        v_add_u32 v1, s{T0}, v1
        global_store_dword v1, v126, s[{S_WS}:{S_WS+1}]
        """)
    a("s_endpgm")
    a(f"""
    P2_SW:
    s_mov_b32 s{SRD_D}, s{SRD_WO}
    s_mov_b32 s{SRD_D+1}, s{SRD_WO+1}
    s_mov_b32 s{SRD_D+2}, s{SRD_WO+2}
    s_mov_b32 s{SRD_D+3}, s{SRD_WO+3}
    s_mov_b32 s{S_BASE}, 0
    s_mov_b32 s{S_IDX}, 0
    s_mov_b32 s{S_STEP}, {256*2048}
    v_mov_b32 v{VD}, v{VW}
    v_mov_b32 v{VD+1}, v{VW+1}
    v_mov_b32 v{VD+2}, v{VW+2}
    v_mov_b32 v{VD+3}, v{VW+3}
    s_branch P2_SWBACK
    """)
    a("P2_SLOW:")
    a(f"""
    s_lshl_b32 s{T0}, s{S_HP}, 1
    s_add_u32 s{T0}, s{T0}, s{S_HH}
    s_lshl_b32 s{T0}, s{T0}, 18
    v_mov_b32 v{CM}, 0xff800000
    s_mov_b32 s{T1}, 0
    P2_SLOW1:
    s_add_u32 s{T2}, s{T0}, s{T1}
    buffer_load_dwordx4 {vr(KF,4)}, v{VL16}, s[{SRD_WS}:{SRD_WS+3}], s{T2} offen sc1
    buffer_load_dwordx4 {vr(KF+4,4)}, v{VL16}, s[{SRD_WS}:{SRD_WS+3}], s{T2} offen offset:1024 sc1
    s_waitcnt vmcnt(0)
    v_mfma_f32_32x32x16_bf16 {vr(SA,16)}, {vr(KF,4)}, {vr(Q,4)}, 0
    v_mfma_f32_32x32x16_bf16 {vr(SA,16)}, {vr(KF+4,4)}, {vr(Q+4,4)}, {vr(SA,16)}
    s_nop 15
    """)
    for i in range(0, 16, 2):
        a(f"v_max3_f32 v{CM}, v{CM}, v{SA+i}, v{SA+i+1}")
    a(f"""
    s_add_u32 s{T1}, s{T1}, 4096
    s_cmp_lt_u32 s{T1}, {64*4096}
    s_cbranch_scc1 P2_SLOW1
    v_mov_b32 v{CM+1}, v{CM}
    s_nop 1
    v_permlane32_swap_b32 v{CM}, v{CM+1}
    s_nop 1
    v_max_f32 v{CM}, v{CM}, v{CM+1}
    v_sub_f32 v{CM}, 0, v{CM}
    """)
    for i in range(1, 16): a(f"v_mov_b32 v{CM+i}, v{CM}")
    for r in range(16): a(f"v_mov_b32 v{O+r}, 0")
    for r in range(4): a(f"v_mov_b32 v{L+r}, 0")
    a(f"""
    s_mov_b32 s{T1}, 0
    P2_SLOW2:
    s_add_u32 s{T2}, s{T0}, s{T1}
    buffer_load_dwordx4 {vr(KF,4)}, v{VL16}, s[{SRD_WS}:{SRD_WS+3}], s{T2} offen sc1
    buffer_load_dwordx4 {vr(KF+4,4)}, v{VL16}, s[{SRD_WS}:{SRD_WS+3}], s{T2} offen offset:1024 sc1
    buffer_load_dwordx4 {vr(VF,4)}, v{VL16}, s[{SRD_WS}:{SRD_WS+3}], s{T2} offen offset:2048 sc1
    buffer_load_dwordx4 {vr(VF+4,4)}, v{VL16}, s[{SRD_WS}:{SRD_WS+3}], s{T2} offen offset:3072 sc1
    s_waitcnt vmcnt(0)
    """)
    QK0(SA); QK1(SA)
    a("s_nop 15")
    exps(SA, 0, 16)
    a("s_nop 1")
    cvts(SA, 0, 8)
    a("s_nop 1")
    PV0(); PV1(); SM0(); SM1()
    a(f"""
    s_add_u32 s{T1}, s{T1}, 4096
    s_cmp_lt_u32 s{T1}, {64*4096}
    s_cbranch_scc1 P2_SLOW2
    s_nop 15
    s_branch P2_NORM
    K_END:
    s_endpgm
    """)
    return name, 256

def descriptor(name, vgpr, sgpr=102):
    acc = (vgpr + 3) // 4 * 4
    return f""".amdhsa_kernel {name}
  .amdhsa_next_free_vgpr {vgpr}
  .amdhsa_next_free_sgpr {sgpr}
  .amdhsa_accum_offset {acc}
  .amdhsa_group_segment_fixed_size 0
  .amdhsa_kernarg_size 48
  .amdhsa_user_sgpr_count 2
  .amdhsa_user_sgpr_kernarg_segment_ptr 1
  .amdhsa_system_sgpr_workgroup_id_x 1
.end_amdhsa_kernel
"""

def main():
    hdr = """; MHA block, fused: QKV GEMM -> attention -> out projection (one persistent workgroup per CU)
; @launch grid=(256,1,1) block=(512,1,1) lds=163840
.amdgcn_target "amdgcn-amd-amdhsa--gfx950"
.text
"""
    a = A()
    n, v = gen(a)
    out = hdr + a.text() + '.section .rodata,"a"\n.p2align 6\n' + descriptor(n, v)
    path = [x for x in ARGS if not x.startswith("--")]
    open(path[0] if path else "fused.s", "w").write(out)

main()
```

```python
import struct, sys

def f32hex(x):
    return "0x%08x" % struct.unpack("<I", struct.pack("<f", x))[0]

class A:
    def __init__(self):
        self.l = []
    def __call__(self, s):
        for line in s.strip("\n").split("\n"):
            t = line.strip()
            if not t: continue
            self.l.append(t if t.endswith(":") else "  " + t)
    def text(self):
        return "\n".join(self.l) + "\n"

def vr(b, n=1):
    return f"v{b}" if n == 1 else f"v[{b}:{b+n-1}]"
def sr(b, n=1):
    return f"s{b}" if n == 1 else f"s[{b}:{b+n-1}]"

ARGS = sys.argv[1:]
OPT = set(x[6:] for x in ARGS if x.startswith("--opt="))
STAMP = "--stamp" in ARGS
def optval(name, default):
    for x in ARGS:
        if x.startswith(f"--{name}="): return x[len(name)+3:]
    return default

C_SCALE = 1.4426950408889634 / (32 ** 0.5)
WS_KV = 0
WS_O = 8 << 20
WS_F1 = 12 << 20
WS_F2 = (12 << 20) + 4096
WS_SIZE = 16 << 20
STAMP_OFF = 32 << 20
SPIN_MAX = 1 << 17

S_X, S_WQ, S_WO, S_OUT, S_DBG, S_WS = 4, 6, 8, 10, 12, 14
S_HP, S_TB, S_W, S_HH = 16, 17, 18, 19
SRD_WS, SRD_X, SRD_W, SRD_OUT, SRD_WO, SRD_D = 20, 24, 28, 32, 36, 40
S_TH, S_TB3, S_CG = 44, 45, 46
T0, T1, T2, T3, T4, T5 = 47, 48, 49, 50, 51, 52
S_C, S_IDX, S_STEP, S_BASE, S_SOFF, S_WL, S_MASK = 56, 57, 58, 59, 60, 61, 62
S_SLOT, S_XO, S_WOF, S_XL, S_WL2, S_B = 56, 57, 58, 59, 60, 61
S_NON = 64
S_SPIN = 66
S_EX = 68
ST0 = 70
NSTAMP = 12

stamp_n = [0]
def stamp(a, idx):
    if not STAMP: return
    a(f"s_memtime s[98:99]\ns_waitcnt lgkmcnt(0)\ns_mov_b32 s{ST0+idx}, s98")

K1_STAGE = 40960

def gen(a):
    name = "standalone__mha_block__prompt_kernel"
    a.l.append(f".globl {name}")
    a.l.append(".p2align 8")
    a.l.append(f".type {name},@function")
    a.l.append(f"{name}:")
    a(f"""
    s_cmp_ge_u32 s2, 256
    s_cbranch_scc1 K_END
    s_load_dwordx8 s[4:11], s[0:1], 0
    s_load_dwordx4 s[12:15], s[0:1], 32
    """)
    if STAMP:
        a("s_memrealtime s[96:97]")
        for i in range(NSTAMP): a(f"s_mov_b32 s{ST0+i}, 0")
        a(f"s_memtime s[98:99]")
    a(f"""
    v_lshrrev_b32 v1, 6, v0
    {"v_xor_b32 v1, 4, v1" if "swap" in OPT else ""}
    v_and_b32 v0, 63, v0
    s_and_b32 s{T0}, s2, 7            ; xcd
    s_lshr_b32 s{T1}, s2, 3           ; loc
    v_readfirstlane_b32 s{S_W}, v1
    s_lshr_b32 s{S_HP}, s{T0}, 1
    s_lshl_b32 s{S_HP}, s{S_HP}, 2
    s_add_u32 s{T2}, s{T1}, {int(optval('hprot', 0))}
    s_and_b32 s{T2}, s{T2}, 3
    s_add_u32 s{S_HP}, s{S_HP}, s{T2}
    s_and_b32 s{S_TB}, s{T0}, 1
    s_lshl_b32 s{S_TB}, s{S_TB}, 3
    s_lshr_b32 s{T2}, s{T1}, 2
    s_add_u32 s{S_TB}, s{S_TB}, s{T2}
    s_lshl_b32 s{S_TB3}, s{T0}, 1
    s_and_b32 s{T2}, s{T1}, 1
    s_add_u32 s{S_TB3}, s{S_TB3}, s{T2}
    s_lshr_b32 s{S_CG}, s{T1}, 1
    s_waitcnt lgkmcnt(0)
    """)
    if STAMP: a(f"s_mov_b32 s{ST0}, s98")
    def dbgt(idx, inv=False):
        if "dbgtime" not in OPT: return
        slot = {4: 0, 8: 1, 6: 2, 9: 3, 7: 4, 5: 5}[idx]
        a(f"s_memrealtime s[94:95]\ns_waitcnt lgkmcnt(0)\ns_mov_b32 s{82+slot}, s94")
        if idx == 5:
            a(f"""
            s_cmp_lg_u32 s{S_W}, 0
            s_cbranch_scc1 DBGT_DONE
            s_mov_b32 s94, 8
            s_cmp_eq_u32 s2, 0
            s_cbranch_scc1 DBGT_GO
            s_mov_b32 s94, 32
            s_cmp_eq_u32 s2, 255
            s_cbranch_scc0 DBGT_DONE
            DBGT_GO:
            v_mov_b32 v1, s94
            """)
            for i in range(6): a(f"v_mov_b32 v{4+i}, s{82+i}")
            a(f"""
            s_mov_b64 exec, 1
            global_store_dwordx4 v1, v[4:7], s[{S_DBG}:{S_DBG+1}]
            global_store_dwordx2 v1, v[8:9], s[{S_DBG}:{S_DBG+1}] offset:16
            DBGT_DONE:
            """)
    dbgt(4, True)
    a(f"""
    s_cmp_ge_u32 s{S_W}, 4
    s_cbranch_scc1 P1_LOADER
    """)
    XA = [4, 5, 6, 7]; WA = 8
    setA = dict(x0=16, x1=20, wq=24, wk=28, wv=32)
    setB = dict(x0=36, x1=40, wq=44, wk=48, wv=52)
    ACC = 64
    a(f"""
    s_setprio 1
    s_and_b32 s{S_HH}, s{S_W}, 1
    s_lshr_b32 s{S_TH}, s{S_W}, 1
    v_and_b32 v1, 31, v0
    v_lshrrev_b32 v2, 5, v0            ; h
    v_lshrrev_b32 v3, 1, v1
    v_and_b32 v3, 7, v3                ; (row>>1)&7
    v_xor_b32 v3, v3, v2               ; t = h ^ swz
    s_lshl_b32 s{T0}, s{S_TH}, 6
    v_add_u32 v1, s{T0}, v1            ; row
    v_lshlrev_b32 v1, 7, v1            ; row*128
    """)
    for j in range(4):
        a(f"""
        v_xor_b32 v9, {2*j}, v3
        v_lshlrev_b32 v9, 4, v9
        v_add_u32 v{XA[j]}, v1, v9
        """)
    a(f"""
    v_lshrrev_b32 v1, 2, v0
    v_and_b32 v1, 3, v1                ; r
    v_lshlrev_b32 v3, 3, v2            ; 8h
    v_add_u32 v3, v3, v1
    v_lshlrev_b32 v3, 7, v3            ; (8h+r)*128
    v_lshrrev_b32 v9, 1, v1            ; r>>1
    v_xor_b32 v9, s{S_HH}, v9
    v_lshlrev_b32 v9, 6, v9
    v_add_u32 v3, v3, v9
    v_lshrrev_b32 v9, 4, v0
    v_and_b32 v9, 1, v9
    v_lshlrev_b32 v9, 5, v9
    v_add_u32 v3, v3, v9
    v_and_b32 v9, 3, v0
    v_lshlrev_b32 v9, 3, v9
    v_add_u32 v3, v3, v9
    v_add_u32 v{WA}, 16384, v3
    """)
    if "ord" in OPT or "pf" in OPT:
        if "ord" in OPT: a("s_barrier")
        if "pf" in OPT:
            a(f"""
            s_and_b32 s{T0}, s2, 7
            s_lshr_b32 s{T1}, s2, 3
            s_cmp_ge_u32 s{S_W}, 2
            s_cbranch_scc1 PF_NOX
            s_and_b32 s{T2}, s{T0}, 1
            s_lshl_b32 s{T2}, s{T2}, 10
            s_lshr_b32 s{T3}, s{T0}, 1
            s_lshl_b32 s{T3}, s{T3}, 8
            s_add_u32 s{T2}, s{T2}, s{T3}
            s_lshl_b32 s{T3}, s{T1}, 3
            s_add_u32 s{T2}, s{T2}, s{T3}
            s_lshl_b32 s{T3}, s{S_W}, 2
            s_add_u32 s{T2}, s{T2}, s{T3}
            v_lshrrev_b32 v200, 4, v0
            v_add_u32 v200, s{T2}, v200
            v_lshlrev_b32 v200, 11, v200
            v_and_b32 v201, 15, v0
            v_lshlrev_b32 v201, 7, v201
            v_add_u32 v200, v200, v201
            global_load_dword v202, v200, s[{S_X}:{S_X+1}]
            PF_NOX:
            s_cmp_eq_u32 s{S_W}, 0
            s_cbranch_scc1 PF_NOW
            s_mul_i32 s{T2}, s{T1}, 96
            s_and_b32 s{T3}, s{T0}, 1
            s_mul_i32 s{T3}, s{T3}, 48
            s_add_u32 s{T2}, s{T2}, s{T3}
            s_sub_u32 s{T3}, s{S_W}, 1
            s_lshl_b32 s{T3}, s{T3}, 4
            s_add_u32 s{T2}, s{T2}, s{T3}
            v_lshrrev_b32 v200, 2, v0
            v_add_u32 v200, s{T2}, v200
            v_lshlrev_b32 v200, 11, v200
            v_and_b32 v201, 3, v0
            v_lshlrev_b32 v201, 7, v201
            v_add_u32 v200, v200, v201
            s_lshr_b32 s{T3}, s{T0}, 1
            s_lshl_b32 s{T3}, s{T3}, 9
            v_add_u32 v200, s{T3}, v200
            global_load_dword v203, v200, s[{S_WQ}:{S_WQ+1}]
            PF_NOW:
            """)
        if "ord" in OPT: a("s_barrier\ns_barrier")
    if "probe" in OPT: a("s_waitcnt vmcnt(0)\ns_branch FINSTAMP")
    for r in range(ACC, ACC + 96):
        a(f"v_mov_b32 v{r}, 0")
    RD = ["x0", "wq0", "wq1", "wk0", "wk1", "wv0", "wv1", "x1"]
    def rd(st, j, nm):
        if nm == "x0": a(f"ds_read_b128 {vr(st['x0'],4)}, v{XA[j]}")
        elif nm == "x1": a(f"ds_read_b128 {vr(st['x1'],4)}, v{XA[j]} offset:4096")
        else:
            si = {"q": 0, "k": 1, "v": 2}[nm[1]]; e = int(nm[2])
            a(f"ds_read_b64_tr_b16 {vr(st['w'+nm[1]]+2*e,2)}, v{WA} offset:{si*8192 + j*2048 + e*512}")
    def mf(st, i):
        tt = i // 3
        x = vr(st['x0' if tt == 0 else 'x1'], 4)
        k = i % 3
        d = vr(ACC + 32*k + 16*tt, 16)
        if k == 0: a(f"v_mfma_f32_32x32x16_bf16 {d}, {vr(st['wq'],4)}, {x}, {d}")
        elif k == 1: a(f"v_mfma_f32_32x32x16_bf16 {d}, {vr(st['wk'],4)}, {x}, {d}")
        else: a(f"v_mfma_f32_32x32x16_bf16 {d}, {x}, {vr(st['wv'],4)}, {d}")
    a(f"""
    s_mov_b32 s{T3}, 0
    s_mov_b32 s{T4}, 0
    s_barrier
    """)
    stamp(a, 1)
    dbgt(8)
    for nm in RD: rd(setA, 0, nm)
    a("P1_LOOP:")
    for j in range(4):
        cur, nxt = (setA, setB) if j % 2 == 0 else (setB, setA)
        jn = (j + 1) % 4
        if j < 3:
            a("s_waitcnt lgkmcnt(5)"); mf(cur, 0); rd(nxt, jn, RD[0]); rd(nxt, jn, RD[1])
            a("s_waitcnt lgkmcnt(5)"); mf(cur, 1); rd(nxt, jn, RD[2]); rd(nxt, jn, RD[3])
            a("s_waitcnt lgkmcnt(5)"); mf(cur, 2); rd(nxt, jn, RD[4]); rd(nxt, jn, RD[5])
            a("s_waitcnt lgkmcnt(6)"); mf(cur, 3); rd(nxt, jn, RD[6]); rd(nxt, jn, RD[7])
            mf(cur, 4); mf(cur, 5)
        else:
            a("s_waitcnt lgkmcnt(5)"); mf(cur, 0)
            a(f"""
            s_add_u32 s{T4}, s{T4}, 1
            s_and_b32 s{T4}, s{T4}, 3
            s_mov_b32 s{T5}, {K1_STAGE}
            s_cselect_b32 s{T5}, s{T5}, {(-3*K1_STAGE) & 0xffffffff}
            s_waitcnt lgkmcnt(0)
            s_barrier
            """)
            mf(cur, 1)
            for r in XA + [WA]:
                a(f"v_add_u32 v{r}, s{T5}, v{r}")
            rd(nxt, jn, RD[0]); rd(nxt, jn, RD[1])
            mf(cur, 2); rd(nxt, jn, RD[2]); rd(nxt, jn, RD[3])
            mf(cur, 3); rd(nxt, jn, RD[4]); rd(nxt, jn, RD[5])
            mf(cur, 4); rd(nxt, jn, RD[6]); rd(nxt, jn, RD[7])
            mf(cur, 5)
            if "cs1" in OPT:
                a(f"s_memtime s[98:99]\ns_waitcnt lgkmcnt(0)\nv_mov_b32 v205, s98\nv_cmp_eq_u32 vcc, s{T3}, v0\ns_nop 1\nv_cndmask_b32 v204, v204, v205, vcc")
            a(f"""
            s_add_u32 s{T3}, s{T3}, 1
            s_cmp_lt_u32 s{T3}, 16
            s_cbranch_scc1 P1_LOOP
            """)
    stamp(a, 2)
    dbgt(6)
    a(f"""
    s_setprio 0
    s_waitcnt lgkmcnt(0)
    s_mov_b32 s{SRD_WS}, s{S_WS}
    s_and_b32 s{SRD_WS+1}, s{S_WS+1}, 0xffff
    s_mov_b32 s{SRD_WS+2}, {WS_SIZE}
    s_mov_b32 s{SRD_WS+3}, 0x20000
    s_lshl_b32 s{T0}, s{S_HP}, 1
    s_add_u32 s{T0}, s{T0}, s{S_HH}
    s_lshl_b32 s{T1}, s{S_TB}, 2
    s_lshl_b32 s{T2}, s{S_TH}, 1
    s_add_u32 s{T1}, s{T1}, s{T2}
    s_lshl_b32 s{T3}, s{T0}, 18
    s_lshl_b32 s{T4}, s{T1}, 12
    s_add_u32 s{T3}, s{T3}, s{T4}
    s_add_u32 s{T4}, s{T3}, 4096         ; tt=1
    v_lshlrev_b32 v3, 4, v0              ; lane*16
    s_lshl_b32 s{T0}, s{S_HH}, 14
    s_lshl_b32 s{T1}, s{S_TH}, 13
    s_add_u32 s{T0}, s{T0}, s{T1}
    v_add_u32 v2, s{T0}, v3
    s_nop 3
    """)
    def cvt(dst, src, n):
        for i in range(n):
            a(f"v_cvt_pk_bf16_f32 v{dst+i}, v{src+2*i}, v{src+2*i+1}")
    cvt(16, ACC + 32, 8)
    cvt(24, ACC + 64, 8)
    for i in range(4):
        a(f"buffer_store_dwordx4 {vr(16+4*i,4)}, v3, s[{SRD_WS}:{SRD_WS+3}], s{T3} offen offset:{1024*i} sc1")
    cvt(32, ACC + 48, 8)
    cvt(40, ACC + 80, 8)
    for i in range(4):
        a(f"buffer_store_dwordx4 {vr(32+4*i,4)}, v3, s[{SRD_WS}:{SRD_WS+3}], s{T4} offen offset:{1024*i} sc1")
    for i in range(8):
        a(f"ds_write_b128 v2, {vr(16+4*i,4)} offset:{1024*i}")
    a(f"s_mov_b32 s{T0}, {f32hex(C_SCALE)}")
    for r in range(ACC + 16, ACC + 32):
        a(f"v_mul_f32 v{r}, s{T0}, v{r}")
    cvt(48, ACC + 16, 8)
    QX = 98304
    a(f"""
    s_lshl_b32 s{T1}, s{S_W}, 11
    s_add_u32 s{T1}, s{T1}, {QX}
    v_add_u32 v2, s{T1}, v3
    """)
    for r in range(ACC, ACC + 16):
        a(f"v_mul_f32 v{r}, s{T0}, v{r}")
    a(f"""
    ds_write_b128 v2, {vr(48,4)}
    ds_write_b128 v2, {vr(52,4)} offset:1024
    """)
    cvt(4, ACC, 8)
    a("s_branch P2_START")
    a("P1_LOADER:")
    a(f"""
    s_sub_u32 s{T0}, s{S_W}, 4         ; q
    s_lshl_b32 s{T1}, s{S_TB}, 18
    s_add_u32 s{SRD_X}, s{S_X}, s{T1}
    s_addc_u32 s{SRD_X+1}, s{S_X+1}, 0
    s_and_b32 s{SRD_X+1}, s{SRD_X+1}, 0xffff
    s_mov_b32 s{SRD_X+2}, 262144
    s_mov_b32 s{SRD_X+3}, 0x20000
    ; x voffsets v4..v7: row = 8*(4q+n) + (l>>3); chunk = (l&7) ^ (l>>4) ^ (4*(n&1)) ; minus n*1024 (inst offset)
    v_lshrrev_b32 v1, 3, v0          ; l>>3
    v_and_b32 v2, 7, v0
    v_lshrrev_b32 v3, 4, v0
    v_xor_b32 v2, v2, v3
    s_lshl_b32 s{T1}, s{T0}, 5       ; 32q
    v_add_u32 v3, s{T1}, v1
    v_lshlrev_b32 v3, 11, v3
    v_lshlrev_b32 v9, 4, v2
    v_add_u32 v4, v3, v9
    v_xor_b32 v9, 64, v9
    v_add_u32 v5, v3, v9
    v_add_u32 v5, {16384-1024}, v5
    v_add_u32 v6, {32768-2048}, v4
    v_add_u32 v7, {32768-2048}, v5
    s_lshl_b32 s{S_XL}, s{T0}, 12
    s_mov_b32 s{S_XO}, 0
    s_mov_b32 s{S_SLOT}, 0
    """)
    def issue_x():
        a(f"s_add_u32 m0, s{S_SLOT}, s{S_XL}\ns_nop 0")
        for n in range(4):
            if "nox" in OPT: a("s_nop 0"); continue
            a(f"buffer_load_dwordx4 v{4+n}, s[{SRD_X}:{SRD_X+3}], s{S_XO} offen offset:{n*1024} lds")
    def issue_w():
        a(f"s_add_u32 m0, s{S_SLOT}, s{S_WL2}\ns_add_u32 s{S_XO}, s{S_XO}, 128")
        for n in range(4):
            if "now" in OPT: continue
            a(f"buffer_load_dwordx4 v{10+n}, s[{SRD_W}:{SRD_W+3}], s{S_WOF} offen offset:{n*1024} lds")
        a(f"s_add_u32 m0, m0, 4096\ns_nop 0")
        for n in range(4, 6):
            if "now" in OPT: continue
            a(f"buffer_load_dwordx4 v{10+n}, s[{SRD_W}:{SRD_W+3}], s{S_WOF} offen offset:{(n-4)*1024} lds")
        a(f"""
        s_add_u32 s{S_WOF}, s{S_WOF}, {64*6144}
        s_add_u32 s{S_SLOT}, s{S_SLOT}, {K1_STAGE}
        s_cmp_eq_u32 s{S_SLOT}, {4*K1_STAGE}
        s_cselect_b32 s{S_SLOT}, 0, s{S_SLOT}
        """)
    PER = 10 - (4 if "nox" in OPT else 0) - (6 if "now" in OPT else 0)
    issue_x()
    a(f"""
    s_lshl_b32 s{T1}, s{S_HP}, 7
    s_add_u32 s{SRD_W}, s{S_WQ}, s{T1}
    s_addc_u32 s{SRD_W+1}, s{S_WQ+1}, 0
    s_and_b32 s{SRD_W+1}, s{SRD_W+1}, 0xffff
    s_sub_u32 s{SRD_W+2}, {1024*6144}, s{T1}
    s_mov_b32 s{SRD_W+3}, 0x20000
    v_lshrrev_b32 v2, 2, v0
    v_lshrrev_b32 v3, 4, v0
    v_xor_b32 v2, v2, v3
    v_and_b32 v2, 1, v2              ; hh
    v_lshlrev_b32 v2, 6, v2
    v_and_b32 v3, 3, v0
    v_lshlrev_b32 v3, 4, v3
    v_add_u32 v2, v2, v3             ; hh*64 + (l&3)*16
    v_mul_u32_u24 v3, 6144, v1       ; (l>>3)*6144
    v_add_u32 v2, v2, v3
    s_mul_i32 s{T1}, s{T0}, 6
    """)
    for n in range(6):
        a(f"""
        s_add_u32 s{T2}, s{T1}, {n}
        s_lshr_b32 s{T3}, s{T2}, 3
        s_and_b32 s{T2}, s{T2}, 7
        s_mul_i32 s{T2}, s{T2}, {8*6144}
        s_lshl_b32 s{T3}, s{T3}, 11
        s_add_u32 s{T2}, s{T2}, s{T3}
        s_sub_u32 s{T2}, s{T2}, {(n if n < 4 else n-4)*1024}
        v_add_u32 v{10+n}, s{T2}, v2
        """)
    a(f"""
    v_mov_b32 v18, 0
    s_mul_i32 s{S_WL2}, s{T0}, 6144
    s_add_u32 s{S_WL2}, s{S_WL2}, 16384
    s_mov_b32 s{S_WOF}, 0
    """)
    issue_w()
    NINIT = int(optval("ninit", 4))
    for i_ in range(NINIT - 1):
        if "ord" in OPT: a("s_barrier")
        if "probe" in OPT and i_ + 1 >= int(optval("nst", 4)): continue
        issue_x(); issue_w()
    PFA, PFB, PFC = [int(x) for x in optval("pfat", "0,1,3").split(",")]
    S_PF0, S_PF1, S_PB0, S_PB1 = 62, 63, 88, 90
    if "pf2" in OPT:
        a(f"""
        s_and_b32 s{T1}, s2, 7            ; xcd
        s_lshr_b32 s{T2}, s2, 3           ; loc
        s_and_b32 s{T3}, s{T1}, 1         ; b
        s_lshr_b32 s{T1}, s{T1}, 1        ; a
        v_lshrrev_b32 v20, 2, v0
        v_add_u32 v21, -4, v20
        v_cmp_lt_u32 vcc, 11, v20
        s_lshl_b32 s{T4}, s{T3}, 5
        s_add_u32 s{T4}, s{T4}, s{T2}
        s_mul_i32 s{T4}, s{T4}, 12
        v_cndmask_b32 v20, v20, v21, vcc
        v_add_u32 v20, s{T4}, v20
        v_lshlrev_b32 v20, 11, v20
        v_and_b32 v21, 3, v0
        v_lshlrev_b32 v21, 7, v21
        v_add_u32 v20, v20, v21
        s_lshl_b32 s{T4}, s{T1}, 9
        v_add_u32 v20, s{T4}, v20          ; W G0 address
        s_lshl_b32 s{T4}, s{T3}, 10
        s_lshl_b32 s{T5}, s{T1}, 8
        s_add_u32 s{T4}, s{T4}, s{T5}
        s_lshl_b32 s{T5}, s{T2}, 3
        s_add_u32 s{T4}, s{T4}, s{T5}
        v_lshrrev_b32 v22, 3, v0
        v_add_u32 v22, s{T4}, v22
        v_lshlrev_b32 v22, 11, v22
        v_and_b32 v23, 7, v0
        v_lshlrev_b32 v23, 7, v23
        v_add_u32 v23, v22, v23
        v_add_u32 v23, 512, v23            ; cols 4..11
        v_and_b32 v21, 3, v0
        v_lshlrev_b32 v21, 7, v21
        v_add_u32 v22, v22, v21
        v_add_u32 v22, 1536, v22           ; cols 12..15
        s_cmp_eq_u32 s{T0}, 1              ; q == 1 : x
        s_cbranch_scc1 PF2_X
        ; W waves: q0: G1 / G3 ; q2: G2
        s_mov_b32 s{S_PB0}, s{S_WQ}
        s_mov_b32 s{S_PB0+1}, s{S_WQ+1}
        s_cmp_eq_u32 s{T0}, 0
        s_mov_b32 s{T5}, {768*2048}
        s_cselect_b32 s{T4}, s{T5}, {2*768*2048}
        s_cselect_b32 s{S_PF0}, {PFA}, {PFB}
        s_cselect_b32 s{S_PF1}, {PFC}, 99
        s_cmp_eq_u32 s{T0}, 3
        s_cselect_b32 s{S_PF0}, 99, s{S_PF0}
        v_add_u32 v24, s{T4}, v20
        v_add_u32 v25, {3*768*2048}, v20
        s_branch PF2_DONE
        PF2_X:
        s_mov_b32 s{S_PB0}, s{S_X}
        s_mov_b32 s{S_PB0+1}, s{S_X+1}
        s_mov_b32 s{S_PF0}, {PFA}
        s_mov_b32 s{S_PF1}, {PFC}
        v_mov_b32 v24, v23
        v_mov_b32 v25, v22
        PF2_DONE:
        """)
    if "probe" in OPT:
        stamp(a, 1)
        for i, n in enumerate((36 if "nox" not in OPT and "now" not in OPT else 3*PER+PER//2, 3*PER, 2*PER, PER, 0)):
            a(f"s_waitcnt vmcnt({n})"); stamp(a, 2 + i)
        a("s_branch FINSTAMP")
    a(f"""
    s_cmp_lg_u32 s2, 0
    s_cbranch_scc1 P1_NONON
    s_cmp_lg_u32 s{S_W}, 7
    s_cbranch_scc1 P1_NONON
    s_memrealtime s[{S_NON}:{S_NON+1}]
    s_waitcnt lgkmcnt(0)
    s_or_b32 s{S_NON}, s{S_NON}, 1
    v_mov_b32 v16, s{S_NON}
    v_mov_b32 v17, s{S_NON+1}
    global_store_dwordx2 v18, v[16:17], s[{S_DBG}:{S_DBG+1}] sc1
    P1_NONON:
    {f"s_waitcnt vmcnt({3*PER})" if NINIT == 4 else ""}
    {"s_barrier" if NINIT == 4 else ""}
    s_mov_b32 s{S_B}, {1 if NINIT == 4 else 0}
    P1_LLOOP:
    s_waitcnt vmcnt({2*PER})
    s_barrier
    """)
    issue_x(); issue_w()
    if "pf2" in OPT:
        a(f"""
        s_cmp_lg_u32 s{S_B}, s{S_PF0}
        s_cbranch_scc1 PF2_N0
        global_load_dword v26, v24, s[{S_PB0}:{S_PB0+1}]
        PF2_N0:
        s_cmp_lg_u32 s{S_B}, s{S_PF1}
        s_cbranch_scc1 PF2_N1
        global_load_dword v27, v25, s[{S_PB0}:{S_PB0+1}]
        PF2_N1:
        """)
    a(f"""
    s_cmp_lg_u32 s{S_B}, 8
    s_cbranch_scc1 P1_NONSKIP
    global_load_dwordx2 v[16:17], v18, s[{S_DBG}:{S_DBG+1}] sc1
    P1_NONSKIP:
    s_add_u32 s{S_B}, s{S_B}, 1
    s_cmp_lt_u32 s{S_B}, 13
    s_cbranch_scc1 P1_LLOOP
    s_waitcnt vmcnt({2*PER})
    s_barrier
    s_waitcnt vmcnt({PER})
    s_barrier
    s_waitcnt vmcnt(0)
    s_barrier
    s_mov_b32 s{SRD_WS}, s{S_WS}
    s_and_b32 s{SRD_WS+1}, s{S_WS+1}, 0xffff
    s_mov_b32 s{SRD_WS+2}, {WS_SIZE}
    s_mov_b32 s{SRD_WS+3}, 0x20000
    s_and_b32 s{S_HH}, s{S_W}, 1
    s_lshr_b32 s{S_TH}, s{S_W}, 1
    s_and_b32 s{S_TH}, s{S_TH}, 1
    v_lshlrev_b32 v3, 4, v0
    s_cmp_lg_u32 s{S_W}, 7
    s_cbranch_scc1 P1_NONDONE
    s_mov_b32 s{S_SPIN}, 0
    P1_NONPOLL:
    v_readfirstlane_b32 s{S_NON}, v16
    v_readfirstlane_b32 s{S_NON+1}, v17
    s_add_u32 s{S_SPIN}, s{S_SPIN}, 1
    s_cmp_ge_u32 s{S_SPIN}, {SPIN_MAX}
    s_cbranch_scc1 P1_NONDONE
    s_cmp_eq_u32 s{S_NON}, 0
    s_cbranch_scc0 P1_NONDONE
    s_sleep 2
    global_load_dwordx2 v[16:17], v18, s[{S_DBG}:{S_DBG+1}] sc1
    s_waitcnt vmcnt(0)
    s_branch P1_NONPOLL
    P1_NONDONE:
    s_barrier
    """)
    Q = 4; CM = 16; SA, SB = 32, 48; P = 64; KF = 72; VF = 80; L = 88; ONES = 92; O = 96
    VCUR, VNXT, VL16 = 1, 2, 3
    VD = 112
    VW = 116
    QXA = 120
    a("P2_START:")
    if "p1only" in OPT: a("s_waitcnt vmcnt(0) lgkmcnt(0)\ns_branch FINSTAMP")
    a(f"""
    s_lshl_b32 s{T0}, s{S_CG}, 7
    s_add_u32 s{SRD_WO}, s{S_WO}, s{T0}
    s_addc_u32 s{SRD_WO+1}, s{S_WO+1}, 0
    s_and_b32 s{SRD_WO+1}, s{SRD_WO+1}, 0xffff
    s_sub_u32 s{SRD_WO+2}, {1024*2048}, s{T0}
    s_mov_b32 s{SRD_WO+3}, 0x20000
    s_mov_b32 s{SRD_D}, s{SRD_WS}
    s_mov_b32 s{SRD_D+1}, s{SRD_WS+1}
    s_mov_b32 s{SRD_D+2}, s{SRD_WS+2}
    s_mov_b32 s{SRD_D+3}, s{SRD_WS+3}
    v_lshrrev_b32 v{VW}, 3, v0
    v_lshrrev_b32 v{VW+1}, 2, v0
    v_lshrrev_b32 v{VW+2}, 4, v0
    v_xor_b32 v{VW+1}, v{VW+1}, v{VW+2}
    v_and_b32 v{VW+1}, 1, v{VW+1}
    v_lshlrev_b32 v{VW+1}, 6, v{VW+1}
    v_and_b32 v{VW+2}, 3, v0
    v_lshlrev_b32 v{VW+2}, 4, v{VW+2}
    v_add_u32 v{VW+1}, v{VW+1}, v{VW+2}
    s_lshl_b32 s{T0}, s{S_W}, 5
    v_add_u32 v{VW}, s{T0}, v{VW}
    v_lshlrev_b32 v{VW}, 11, v{VW}
    v_add_u32 v{VW}, v{VW}, v{VW+1}
    v_add_u32 v{VW+1}, {16384-1024}, v{VW}
    v_add_u32 v{VW+2}, {32768-2048}, v{VW}
    v_add_u32 v{VW+3}, {49152-3072}, v{VW}
    v_mov_b32 v{VD}, v{VL16}
    v_mov_b32 v{VD+1}, v{VL16}
    v_mov_b32 v{VD+2}, v{VL16}
    v_mov_b32 v{VD+3}, v{VL16}
    s_lshr_b32 s{T0}, s{S_W}, 2
    s_lshl_b32 s{T1}, s{S_HP}, 1
    s_add_u32 s{T1}, s{T1}, s{T0}
    s_lshl_b32 s{T1}, s{T1}, 18
    s_and_b32 s{T2}, s{S_W}, 3
    s_lshl_b32 s{T2}, s{T2}, 12
    s_add_u32 s{S_BASE}, s{T1}, s{T2}
    s_lshl_b32 s{S_WL}, s{S_W}, 12
    s_mov_b32 s{S_STEP}, 16384
    s_mov_b32 s{S_IDX}, s{S_TB}
    s_lshl_b32 s{T0}, s{S_HH}, 14
    v_add_u32 v{VCUR}, s{T0}, v{VL16}
    s_and_b32 s{T0}, s{S_W}, 3
    s_lshl_b32 s{T0}, s{T0}, 11
    s_add_u32 s{T0}, s{T0}, {QX}
    v_add_u32 v{QXA}, s{T0}, v{VL16}
    v_lshrrev_b32 v{ONES}, 2, v0
    v_lshrrev_b32 v{ONES+1}, 4, v0
    v_xor_b32 v{ONES}, v{ONES}, v{ONES+1}
    v_and_b32 v{ONES}, 1, v{ONES}
    v_cmp_eq_u32 vcc, 0, v{ONES}
    v_mov_b32 v{ONES+1}, 0x3f803f80
    s_nop 0
    v_cndmask_b32 v{ONES}, 0, v{ONES+1}, vcc
    s_nop 0
    v_mov_b32 v{ONES+1}, v{ONES}
    v_mov_b32 v{ONES+2}, v{ONES}
    v_mov_b32 v{ONES+3}, v{ONES}
    s_waitcnt lgkmcnt(0)
    s_barrier
    """)
    stamp(a, 3)
    a(f"""
    s_add_u32 m0, s{S_WL}, 131072
    s_cmp_lt_u32 s{S_W}, 4
    s_cbranch_scc1 P2_NOQ
    ds_read_b128 {vr(Q,4)}, v{QXA}
    ds_read_b128 {vr(Q+4,4)}, v{QXA} offset:1024
    P2_NOQ:
    ds_read_b128 {vr(KF,4)}, v{VCUR}
    ds_read_b128 {vr(KF+4,4)}, v{VCUR} offset:1024
    """)
    for n in range(4):
        a(f"buffer_load_dwordx4 v{VW+n}, s[{SRD_WO}:{SRD_WO+3}], 0 offen offset:{n*1024} lds")
    for r in range(16): a(f"v_mov_b32 v{O+r}, 0")
    for r in range(4): a(f"v_mov_b32 v{L+r}, 0")
    for r in range(8): a(f"v_mov_b32 v{P+r}, 0")
    for r in range(8): a(f"v_mov_b32 v{VF+r}, 0")
    a(f"""
    s_waitcnt lgkmcnt(0)
    v_mfma_f32_32x32x16_bf16 {vr(SA,16)}, {vr(KF,4)}, {vr(Q,4)}, 0
    v_mfma_f32_32x32x16_bf16 {vr(SA,16)}, {vr(KF+4,4)}, {vr(Q+4,4)}, {vr(SA,16)}
    s_nop 15
    """)
    a(f"v_max3_f32 v{CM}, v{SA}, v{SA+1}, v{SA+2}")
    for i in range(3, 15, 2):
        a(f"v_max3_f32 v{CM}, v{CM}, v{SA+i}, v{SA+i+1}")
    a(f"""
    v_max_f32 v{CM}, v{CM}, v{SA+15}
    v_mov_b32 v{CM+1}, v{CM}
    s_nop 1
    v_permlane32_swap_b32 v{CM}, v{CM+1}
    s_nop 1
    v_max_f32 v{CM}, v{CM}, v{CM+1}
    v_sub_f32 v{CM}, 0, v{CM}
    """)
    for i in range(1, 16): a(f"v_mov_b32 v{CM+i}, v{CM}")
    a(f"""
    s_nop 1
    v_mfma_f32_32x32x16_bf16 {vr(SA,16)}, {vr(KF,4)}, {vr(Q,4)}, {vr(CM,16)}
    v_mfma_f32_32x32x16_bf16 {vr(SA,16)}, {vr(KF+4,4)}, {vr(Q+4,4)}, {vr(SA,16)}
    s_mov_b32 s{S_C}, 0
    s_mov_b32 s{S_MASK}, 0x8000
    s_nop 13
    """)
    def exps(sa, lo, hi):
        for i in range(lo, hi): a(f"v_exp_f32 v{sa+i}, v{sa+i}")
    def cvts(sa, lo, hi):
        for i in range(lo, hi): a(f"v_cvt_pk_bf16_f32 v{P+i}, v{sa+2*i}, v{sa+2*i+1}")
    def QK0(sb): a(f"v_mfma_f32_32x32x16_bf16 {vr(sb,16)}, {vr(KF,4)}, {vr(Q,4)}, {vr(CM,16)}")
    def QK1(sb): a(f"v_mfma_f32_32x32x16_bf16 {vr(sb,16)}, {vr(KF+4,4)}, {vr(Q+4,4)}, {vr(sb,16)}")
    def PV0(): a(f"v_mfma_f32_32x32x16_bf16 {vr(O,16)}, {vr(VF,4)}, {vr(P,4)}, {vr(O,16)}")
    def PV1(): a(f"v_mfma_f32_32x32x16_bf16 {vr(O,16)}, {vr(VF+4,4)}, {vr(P+4,4)}, {vr(O,16)}")
    def SM0(): a(f"v_mfma_f32_16x16x32_bf16 {vr(L,4)}, {vr(ONES,4)}, {vr(P,4)}, {vr(L,4)}")
    def SM1(): a(f"v_mfma_f32_16x16x32_bf16 {vr(L,4)}, {vr(ONES,4)}, {vr(P+4,4)}, {vr(L,4)}")
    def readK(reg, off):
        a(f"ds_read_b128 {vr(KF,4)}, v{reg} offset:{off}\nds_read_b128 {vr(KF+4,4)}, v{reg} offset:{off+1024}")
    def readV(u):
        a(f"ds_read_b128 {vr(VF,4)}, v{VCUR} offset:{u*4096+2048}\nds_read_b128 {vr(VF+4,4)}, v{VCUR} offset:{u*4096+3072}")
    def piece(n, inloop=False):
        if inloop and "nopiece" in OPT: return
        sc = "" if "nosc1" in OPT else " sc1"
        a(f"buffer_load_dwordx4 v{VD+n}, s[{SRD_D}:{SRD_D+3}], s{S_SOFF} offen offset:{n*1024}{sc} lds")
    def next_chunk_params():
        a(f"""
        s_add_u32 s{S_IDX}, s{S_IDX}, 1
        s_and_b32 s{S_IDX}, s{S_IDX}, 15
        s_mul_i32 s{S_SOFF}, s{S_IDX}, s{S_STEP}
        s_add_u32 s{S_SOFF}, s{S_SOFF}, s{S_BASE}
        """)
    def set_m0_for(creg_or_const, add, const=True):
        if const:
            c = (creg_or_const + add) & 3
            g = c ^ (c >> 1)
            a(f"s_add_u32 m0, s{S_WL}, {g*32768}")
        else:
            a(f"""
            s_add_u32 s{T0}, s{creg_or_const}, {add}
            s_and_b32 s{T0}, s{T0}, 3
            s_lshr_b32 s{T1}, s{T0}, 1
            s_xor_b32 s{T0}, s{T0}, s{T1}
            s_lshl_b32 s{T0}, s{T0}, 15
            s_add_u32 m0, s{T0}, s{S_WL}
            """)
    def E(sa, i): return f"v_exp_f32 v{sa+i}, v{sa+i}"
    def C(sa, i): return f"v_cvt_pk_bf16_f32 v{P+i}, v{sa+2*i}, v{sa+2*i+1}"
    def cap(f, *args):
        n = len(a.l); f(*args); r = a.l[n:]; del a.l[n:]; return [x.strip() for x in r]
    def kreads(reg, off):
        return [f"ds_read_b128 {vr(KF,4)}, v{reg} offset:{off}", f"ds_read_b128 {vr(KF+4,4)}, v{reg} offset:{off+1024}"]
    def vreads(u):
        return [f"ds_read_b128 {vr(VF,4)}, v{VCUR} offset:{u*4096+2048}", f"ds_read_b128 {vr(VF+4,4)}, v{VCUR} offset:{u*4096+3072}"]
    SWBLK = []
    def tile(u, first):
        sa, sb = (SA, SB) if u % 2 == 0 else (SB, SA)
        pv0 = cap(PV0)[0]; pv1 = cap(PV1)[0]; sm0 = cap(SM0)[0]; sm1 = cap(SM1)[0]
        qk0 = cap(QK0, sb)[0]; qk1 = cap(QK1, sb)[0]
        slot = {}
        def put(key, ins): slot.setdefault(key, []).append(ins)
        def emit(ins, key):
            a(ins)
            for x in slot.pop(key, []): a(x)
        dopiece = (first and u == 3) or (not first and "nopiece" not in OPT)
        pc = cap(piece, (u + 1) % 4)[0]
        if u < 3:
            if not first and dopiece: put("pv0", pc)
            kr = kreads(VCUR, (u + 1) * 4096)
            put("e0", kr[0]); put("e1", kr[1])
        if u == 2 and not first:
            put("e2", f"s_cmp_eq_u32 s{S_C}, 13")
            put("e3", f"s_cbranch_scc1 P2_SW")
            put("e3", "P2_SWBACK:")
            put("sm0", f"s_add_u32 s{S_IDX}, s{S_IDX}, 1")
            put("e4", f"s_and_b32 s{S_IDX}, s{S_IDX}, 15")
            put("e5", f"s_xor_b32 m0, m0, s{S_MASK}")
            put("e8", f"s_mul_i32 s{S_SOFF}, s{S_IDX}, s{S_STEP}")
            put("e9", f"s_add_u32 s{S_SOFF}, s{S_SOFF}, s{S_BASE}")
        vrd = vreads(u)
        put("pv1", vrd[0]); put("e6", vrd[1])
        if u == 3:
            kr = kreads(VNXT, 0)
            put("e4", kr[0]); put("e5", kr[1])
            if dopiece: put("e8", pc)
            put("e9", f"s_xor_b32 s{S_MASK}, s{S_MASK}, 0x18000")
            put("sm1", f"s_add_u32 s{S_C}, s{S_C}, 1")
            if not first: put("e13", f"s_cmp_lt_u32 s{S_C}, 16")
        put("e11", "s_waitcnt lgkmcnt(2)")
        put("qk1", "s_waitcnt lgkmcnt(0)")
        if "noprio" not in OPT: put("e15", f"s_setprio {3 - (u + 1) % 4}")
        emit(pv0, "pv0")
        for i in range(4): emit(E(sa, i), f"e{i}")
        emit(sm0, "sm0")
        if first and u == 2: X0()
        if u == 3:
            if first: X1()
            if first or "nobar2" not in OPT:
                a("s_waitcnt vmcnt(4)\ns_barrier")
            if first:
                stamp(a, 6)
                next_chunk_params(); set_m0_for(3, 0)
        emit(E(sa, 4), "e4"); emit(E(sa, 5), "e5")
        emit(pv1, "pv1")
        for i in range(6, 10): emit(E(sa, i), f"e{i}")
        emit(sm1, "sm1")
        emit(E(sa, 10), "e10"); emit(E(sa, 11), "e11")
        emit(qk0, "qk0")
        for i in range(12, 16): emit(E(sa, i), f"e{i}")
        emit(qk1, "qk1")
        assert not slot, slot
        for i in range(8):
            a(C(sa, i))
            if u == 2 and i == 3: a(f"v_xor_b32 v{VNXT}, s{S_MASK}, v{VCUR}")
            if u == 3 and i == 3: a(f"v_mov_b32 v{VCUR}, v{VNXT}")
    def X0():
        a(f"""
        s_waitcnt vmcnt(4)
        s_barrier
        """)
        stamp(a, 4)
        a(f"""
        s_cmp_lg_u32 s{S_W}, 7
        s_cbranch_scc1 P2_NOFLAG
        s_lshl_b32 s{T0}, s{S_HP}, 7
        s_lshl_b32 s{T1}, s{S_TB}, 3
        s_add_u32 s{T0}, s{T0}, s{T1}
        s_add_u32 s{T0}, s{T0}, {WS_F1}
        v_mov_b32 v122, s{S_NON}
        v_mov_b32 v123, s{S_NON+1}
        v_mov_b32 v124, 0
        s_mov_b64 s[{S_EX}:{S_EX+1}], exec
        s_mov_b64 exec, 1
        buffer_store_dwordx2 v[122:123], v124, s[{SRD_WS}:{SRD_WS+3}], s{T0} offen sc1
        s_mov_b64 exec, s[{S_EX}:{S_EX+1}]
        P2_NOFLAG:
        """)
    def X1():
        a(f"""
        s_cmp_lg_u32 s{S_W}, 7
        s_cbranch_scc1 P2_NOPOLL
        s_lshl_b32 s{T0}, s{S_HP}, 7
        s_add_u32 s{T0}, s{T0}, {WS_F1}
        v_and_b32 v124, 15, v0
        v_lshlrev_b32 v124, 3, v124
        s_mov_b32 s{S_SPIN}, 0
        P2_POLL:
        buffer_load_dwordx2 v[122:123], v124, s[{SRD_WS}:{SRD_WS+3}], s{T0} offen sc1
        s_waitcnt vmcnt(0)
        v_cmp_ne_u32 vcc, s{S_NON}, v122
        v_cmp_ne_u32 s[{S_EX}:{S_EX+1}], s{S_NON+1}, v123
        s_nop 1
        s_or_b64 vcc, vcc, s[{S_EX}:{S_EX+1}]
        s_add_u32 s{S_SPIN}, s{S_SPIN}, 1
        s_cmp_ge_u32 s{S_SPIN}, {SPIN_MAX}
        s_cbranch_scc1 P2_NOPOLL
        s_cmp_eq_u64 vcc, 0
        s_cbranch_scc1 P2_NOPOLL
        s_sleep 1
        s_branch P2_POLL
        P2_NOPOLL:
        s_barrier
        """)
        stamp(a, 5)
        for cl in (1, 2):
            next_chunk_params()
            set_m0_for(cl, 0)
            a("s_nop 0")
            for n in range(4): piece(n)
    def chunk_end():
        if STAMP and "cs" in OPT:
            a(f"s_memtime s[98:99]\ns_waitcnt lgkmcnt(0)\nv_mov_b32 v127, s98\ns_sub_u32 s99, s{S_C}, 1\nv_cmp_eq_u32 vcc, s99, v0\ns_nop 1\nv_cndmask_b32 v126, v126, v127, vcc")
            a(f"s_cmp_lt_u32 s{S_C}, 16")
    a("s_setprio 3")
    a("ds_read_b128 v[124:127], v3\nds_read_b128 v[124:127], v3" if False else "")
    for u in range(4): tile(u, True)
    chunk_end()
    if "al64" in OPT: a.l.append(".p2align 6")
    if "al4" in OPT: a.l.append(".p2align 6"); a("s_nop 0")
    a("P2_LOOP:")
    for u in range(4): tile(u, False)
    chunk_end()
    a(f"""
    s_cbranch_scc1 P2_LOOP
    s_setprio 0
    """)
    stamp(a, 7)
    dbgt(9)
    a("s_waitcnt lgkmcnt(0)\ns_nop 1"); PV0(); SM0(); PV1(); SM1()
    a("s_nop 15")
    Z = 122
    a(f"v_fma_f32 v{Z}, v{L}, 0, 0")
    for r in range(16): a(f"v_fma_f32 v{Z}, v{O+r}, 0, v{Z}")
    a(f"""
    v_cmp_u_f32 vcc, v{Z}, v{Z}
    s_nop 4
    s_cbranch_vccnz P2_SLOW
    P2_NORM:
    v_rcp_f32 v{L+1}, v{L}
    s_nop 0
    """)
    for r in range(16): a(f"v_mul_f32 v{O+r}, v{O+r}, v{L+1}")
    for i in range(8): a(f"v_cvt_pk_bf16_f32 v{P+i}, v{O+2*i}, v{O+2*i+1}")
    a(f"""
    s_lshl_b32 s{T0}, s{S_TB}, 2
    s_lshl_b32 s{T1}, s{S_TH}, 1
    s_add_u32 s{T0}, s{T0}, s{T1}
    s_lshr_b32 s{T1}, s{S_W}, 2
    s_add_u32 s{T0}, s{T0}, s{T1}
    s_lshl_b32 s{T1}, s{S_HP}, 1
    s_add_u32 s{T1}, s{T1}, s{S_HH}
    s_lshl_b32 s{T0}, s{T0}, 16
    s_lshl_b32 s{T1}, s{T1}, 11
    s_add_u32 s{T0}, s{T0}, s{T1}
    s_add_u32 s{T0}, s{T0}, {WS_O}
    buffer_store_dwordx4 {vr(P,4)}, v{VL16}, s[{SRD_WS}:{SRD_WS+3}], s{T0} offen sc1
    buffer_store_dwordx4 {vr(P+4,4)}, v{VL16}, s[{SRD_WS}:{SRD_WS+3}], s{T0} offen offset:1024 sc1
    """)
    for n in (1, 2, 3): piece(n)
    OB = 128; ACC3 = 16; WF = [48, 56]; VT0, VT1 = 4, 5
    a(f"""
    v_lshrrev_b32 v6, 2, v0
    v_and_b32 v6, 3, v6              ; r
    v_lshrrev_b32 v7, 5, v0          ; h
    v_lshlrev_b32 v7, 2, v7
    v_add_u32 v7, v7, v6
    v_lshlrev_b32 v7, 7, v7          ; (4h+r)*128
    v_lshrrev_b32 v6, 1, v6
    v_lshlrev_b32 v6, 6, v6
    v_add_u32 v7, v7, v6
    v_lshrrev_b32 v6, 4, v0
    v_and_b32 v6, 1, v6
    v_lshlrev_b32 v6, 5, v6
    v_add_u32 v7, v7, v6
    v_and_b32 v6, 3, v0
    v_lshlrev_b32 v6, 3, v6
    v_add_u32 v7, v7, v6
    s_lshr_b32 s{T2}, s{S_W}, 2
    s_mov_b32 s{T3}, 32768
    s_mov_b32 s{T4}, {98304 - 32768}
    s_cmp_eq_u32 s{T2}, 0
    s_cselect_b32 s{T3}, 131072, s{T3}
    s_cselect_b32 s{T4}, {(0 - 131072) & 0xffffffff}, s{T4}
    v_add_u32 v{VT0}, s{T3}, v7
    v_xor_b32 v{VT1}, 64, v{VT0}
    """)
    for r in range(32): a(f"v_mov_b32 v{ACC3+r}, 0")
    a(f"""
    s_waitcnt vmcnt(3)
    s_barrier
    """)
    stamp(a, 8)
    a(f"""
    s_cmp_lg_u32 s{S_W}, 7
    s_cbranch_scc1 P3_NOPOLL
    s_lshl_b32 s{T0}, s{S_TB}, 7
    s_lshl_b32 s{T1}, s{S_HP}, 3
    s_add_u32 s{T0}, s{T0}, s{T1}
    s_add_u32 s{T0}, s{T0}, {WS_F2}
    v_mov_b32 v122, s{S_NON}
    v_mov_b32 v123, s{S_NON+1}
    v_mov_b32 v124, 0
    s_mov_b64 s[{S_EX}:{S_EX+1}], exec
    s_mov_b64 exec, 1
    buffer_store_dwordx2 v[122:123], v124, s[{SRD_WS}:{SRD_WS+3}], s{T0} offen sc1
    s_mov_b64 exec, s[{S_EX}:{S_EX+1}]
    s_lshl_b32 s{T0}, s{S_TB3}, 7
    s_add_u32 s{T0}, s{T0}, {WS_F2}
    v_and_b32 v124, 15, v0
    v_lshlrev_b32 v124, 3, v124
    s_mov_b32 s{S_SPIN}, 0
    P3_POLL:
    buffer_load_dwordx2 v[122:123], v124, s[{SRD_WS}:{SRD_WS+3}], s{T0} offen sc1
    s_waitcnt vmcnt(0)
    v_cmp_ne_u32 vcc, s{S_NON}, v122
    v_cmp_ne_u32 s[{S_EX}:{S_EX+1}], s{S_NON+1}, v123
    s_nop 1
    s_or_b64 vcc, vcc, s[{S_EX}:{S_EX+1}]
    s_add_u32 s{S_SPIN}, s{S_SPIN}, 1
    s_cmp_ge_u32 s{S_SPIN}, {SPIN_MAX}
    s_cbranch_scc1 P3_NOPOLL
    s_cmp_eq_u64 vcc, 0
    s_cbranch_scc1 P3_NOPOLL
    s_sleep 1
    s_branch P3_POLL
    P3_NOPOLL:
    s_waitcnt vmcnt(0)
    s_barrier
    """)
    stamp(a, 9)
    dbgt(7)
    a(f"""
    s_lshl_b32 s{T0}, s{S_TB3}, 2
    s_and_b32 s{T1}, s{S_W}, 3
    s_add_u32 s{T0}, s{T0}, s{T1}        ; T
    s_lshl_b32 s{T1}, s{T0}, 16
    s_lshl_b32 s{T2}, s{T2}, 15
    s_add_u32 s{T1}, s{T1}, s{T2}
    s_add_u32 s{T1}, s{T1}, {WS_O}
    """)
    for i in range(32):
        a(f"buffer_load_dwordx4 {vr(OB+4*i,4)}, v{VL16}, s[{SRD_WS}:{SRD_WS+3}], s{T1} offen offset:{(i%4)*1024} sc1")
        if i % 4 == 3 and i < 31: a(f"s_add_u32 s{T1}, s{T1}, 4096")
    def wread(j, buf):
        jj = j % 16
        for ct, vt in ((0, VT0), (1, VT1)):
            for e in range(2):
                a(f"ds_read_b64_tr_b16 {vr(WF[buf]+4*ct+2*e,2)}, v{vt} offset:{jj*2048+e*1024}")
    wread(0, 0)
    for j in range(32):
        if j + 1 < 32:
            if j + 1 == 16:
                a(f"v_add_u32 v{VT0}, s{T4}, v{VT0}\nv_add_u32 v{VT1}, s{T4}, v{VT1}")
            wread(j + 1, (j + 1) % 2)
            a(f"s_waitcnt vmcnt({31-j}) lgkmcnt(4)")
        else:
            a(f"s_waitcnt vmcnt(0) lgkmcnt(0)")
        for ct in range(2):
            a(f"v_mfma_f32_32x32x16_bf16 {vr(ACC3+16*ct,16)}, {vr(WF[j%2]+4*ct,4)}, {vr(OB+4*j,4)}, {vr(ACC3+16*ct,16)}")
    stamp(a, 10)
    RED = 65536
    a(f"""
    s_lshl_b32 s{T1}, s{S_W}, 12
    s_add_u32 s{T1}, s{T1}, {RED}
    v_add_u32 v6, s{T1}, v{VL16}
    s_xor_b32 s{T2}, s{S_W}, 4
    s_lshl_b32 s{T2}, s{T2}, 12
    s_add_u32 s{T2}, s{T2}, {RED}
    v_add_u32 v7, s{T2}, v{VL16}
    s_mov_b32 s{SRD_OUT}, s{S_OUT}
    s_and_b32 s{SRD_OUT+1}, s{S_OUT+1}, 0xffff
    s_mov_b32 s{SRD_OUT+2}, {2048*1024*2}
    s_mov_b32 s{SRD_OUT+3}, 0x20000
    v_and_b32 v1, 31, v0
    s_lshl_b32 s{T0}, s{T0}, 5
    v_add_u32 v1, s{T0}, v1
    v_lshlrev_b32 v1, 11, v1
    v_lshrrev_b32 v2, 5, v0
    v_lshlrev_b32 v2, 4, v2
    v_add_u32 v1, v1, v2
    s_lshr_b32 s{T3}, s{S_W}, 2
    s_lshl_b32 s{T4}, s{S_CG}, 7
    s_lshl_b32 s{T5}, s{T3}, 6
    s_add_u32 s{T4}, s{T4}, s{T5}
    v_add_u32 v1, s{T4}, v1
    s_cmp_eq_u32 s{T3}, 0
    s_cbranch_scc1 P3_KH0
    """)
    def red(send, keep):
        a("s_nop 4")
        for i in range(4): a(f"ds_write_b128 v6, {vr(send+4*i,4)} offset:{1024*i}")
        a("s_waitcnt lgkmcnt(0)\ns_barrier")
        for i in range(4): a(f"ds_read_b128 {vr(64+4*i,4)}, v7 offset:{1024*i}")
        a("s_waitcnt lgkmcnt(0)")
        for r in range(16): a(f"v_add_f32 v{64+r}, v{64+r}, v{keep+r}")
    red(ACC3, ACC3 + 16)
    a("s_branch P3_FIN")
    a("P3_KH0:")
    red(ACC3 + 16, ACC3)
    a("P3_FIN:")
    for i in range(8): a(f"v_cvt_pk_bf16_f32 v{80+i}, v{64+2*i}, v{64+2*i+1}")
    a(f"""
    s_nop 1
    v_permlane32_swap_b32 v80, v82
    v_permlane32_swap_b32 v81, v83
    v_permlane32_swap_b32 v84, v86
    v_permlane32_swap_b32 v85, v87
    s_nop 1
    buffer_store_dwordx4 v[80:83], v1, s[{SRD_OUT}:{SRD_OUT+3}], 0 offen
    buffer_store_dwordx4 v[84:87], v1, s[{SRD_OUT}:{SRD_OUT+3}], 0 offen offset:32
    """)
    if STAMP:
        a("FINSTAMP:")
        if "cs1" in OPT: a("v_mov_b32 v126, v204")
        stamp(a, 11)
        a(f"""
        s_memrealtime s[98:99]
        s_waitcnt lgkmcnt(0)
        s_lshl_b32 s{T0}, s2, 3
        s_add_u32 s{T0}, s{T0}, s{S_W}
        s_lshl_b32 s{T0}, s{T0}, 6
        s_add_u32 s{T0}, s{T0}, {STAMP_OFF}
        v_mov_b32 v1, s{T0}
        v_cmp_eq_u32 vcc, 0, v0
        s_and_saveexec_b64 s[{S_EX}:{S_EX+1}], vcc
        v_mov_b32 v4, s96
        v_mov_b32 v5, s98
        v_mov_b32 v6, s{S_SPIN}
        v_mov_b32 v7, 0
        global_store_dwordx4 v1, v[4:7], s[{S_WS}:{S_WS+1}]
        """)
        for g in range(3):
            for i in range(4): a(f"v_mov_b32 v{4+i}, s{ST0+4*g+i}")
            a(f"global_store_dwordx4 v1, v[4:7], s[{S_WS}:{S_WS+1}] offset:{16+16*g}")
        a(f"""
        s_mov_b64 exec, -1
        s_lshl_b32 s{T0}, s2, 3
        s_add_u32 s{T0}, s{T0}, s{S_W}
        s_lshl_b32 s{T0}, s{T0}, 8
        s_add_u32 s{T0}, s{T0}, {STAMP_OFF + (1 << 20)}
        v_lshlrev_b32 v1, 2, v0
        v_add_u32 v1, s{T0}, v1
        global_store_dword v1, v126, s[{S_WS}:{S_WS+1}]
        """)
    dbgt(5)
    a("s_endpgm")
    a(f"""
    P2_SW:
    s_mov_b32 s{SRD_D}, s{SRD_WO}
    s_mov_b32 s{SRD_D+1}, s{SRD_WO+1}
    s_mov_b32 s{SRD_D+2}, s{SRD_WO+2}
    s_mov_b32 s{SRD_D+3}, s{SRD_WO+3}
    s_mov_b32 s{S_BASE}, 0
    s_mov_b32 s{S_IDX}, 0
    s_mov_b32 s{S_STEP}, {256*2048}
    v_mov_b32 v{VD}, v{VW}
    v_mov_b32 v{VD+1}, v{VW+1}
    v_mov_b32 v{VD+2}, v{VW+2}
    v_mov_b32 v{VD+3}, v{VW+3}
    s_branch P2_SWBACK
    """)
    a("P2_SLOW:")
    a(f"""
    s_lshl_b32 s{T0}, s{S_HP}, 1
    s_add_u32 s{T0}, s{T0}, s{S_HH}
    s_lshl_b32 s{T0}, s{T0}, 18
    v_mov_b32 v{CM}, 0xff800000
    s_mov_b32 s{T1}, 0
    P2_SLOW1:
    s_add_u32 s{T2}, s{T0}, s{T1}
    buffer_load_dwordx4 {vr(KF,4)}, v{VL16}, s[{SRD_WS}:{SRD_WS+3}], s{T2} offen sc1
    buffer_load_dwordx4 {vr(KF+4,4)}, v{VL16}, s[{SRD_WS}:{SRD_WS+3}], s{T2} offen offset:1024 sc1
    s_waitcnt vmcnt(0)
    v_mfma_f32_32x32x16_bf16 {vr(SA,16)}, {vr(KF,4)}, {vr(Q,4)}, 0
    v_mfma_f32_32x32x16_bf16 {vr(SA,16)}, {vr(KF+4,4)}, {vr(Q+4,4)}, {vr(SA,16)}
    s_nop 15
    """)
    for i in range(0, 16, 2):
        a(f"v_max3_f32 v{CM}, v{CM}, v{SA+i}, v{SA+i+1}")
    a(f"""
    s_add_u32 s{T1}, s{T1}, 4096
    s_cmp_lt_u32 s{T1}, {64*4096}
    s_cbranch_scc1 P2_SLOW1
    v_mov_b32 v{CM+1}, v{CM}
    s_nop 1
    v_permlane32_swap_b32 v{CM}, v{CM+1}
    s_nop 1
    v_max_f32 v{CM}, v{CM}, v{CM+1}
    v_sub_f32 v{CM}, 0, v{CM}
    """)
    for i in range(1, 16): a(f"v_mov_b32 v{CM+i}, v{CM}")
    for r in range(16): a(f"v_mov_b32 v{O+r}, 0")
    for r in range(4): a(f"v_mov_b32 v{L+r}, 0")
    a(f"""
    s_mov_b32 s{T1}, 0
    P2_SLOW2:
    s_add_u32 s{T2}, s{T0}, s{T1}
    buffer_load_dwordx4 {vr(KF,4)}, v{VL16}, s[{SRD_WS}:{SRD_WS+3}], s{T2} offen sc1
    buffer_load_dwordx4 {vr(KF+4,4)}, v{VL16}, s[{SRD_WS}:{SRD_WS+3}], s{T2} offen offset:1024 sc1
    buffer_load_dwordx4 {vr(VF,4)}, v{VL16}, s[{SRD_WS}:{SRD_WS+3}], s{T2} offen offset:2048 sc1
    buffer_load_dwordx4 {vr(VF+4,4)}, v{VL16}, s[{SRD_WS}:{SRD_WS+3}], s{T2} offen offset:3072 sc1
    s_waitcnt vmcnt(0)
    """)
    QK0(SA); QK1(SA)
    a("s_nop 15")
    exps(SA, 0, 16)
    a("s_nop 1")
    cvts(SA, 0, 8)
    a("s_nop 1")
    PV0(); PV1(); SM0(); SM1()
    a(f"""
    s_add_u32 s{T1}, s{T1}, 4096
    s_cmp_lt_u32 s{T1}, {64*4096}
    s_cbranch_scc1 P2_SLOW2
    s_nop 15
    s_branch P2_NORM
    K_END:
    s_endpgm
    """)
    return name, 256

def descriptor(name, vgpr, sgpr=102):
    acc = (vgpr + 3) // 4 * 4
    return f""".amdhsa_kernel {name}
  .amdhsa_next_free_vgpr {vgpr}
  .amdhsa_next_free_sgpr {sgpr}
  .amdhsa_accum_offset {acc}
  .amdhsa_group_segment_fixed_size 0
  .amdhsa_kernarg_size 48
  .amdhsa_user_sgpr_count 2
  .amdhsa_user_sgpr_kernarg_segment_ptr 1
  .amdhsa_system_sgpr_workgroup_id_x 1
.end_amdhsa_kernel
"""

def main():
    hdr = """; MHA block, fused: QKV GEMM -> attention -> out projection (one persistent workgroup per CU)
; @launch grid=(256,1,1) block=(512,1,1) lds=163840
.amdgcn_target "amdgcn-amd-amdhsa--gfx950"
.text
"""
    a = A()
    n, v = gen(a)
    out = hdr + a.text() + '.section .rodata,"a"\n.p2align 6\n' + descriptor(n, v)
    path = [x for x in ARGS if not x.startswith("--")]
    open(path[0] if path else "fused.s", "w").write(out)

main()
```

```python
import struct, sys

def f32hex(x):
    return "0x%08x" % struct.unpack("<I", struct.pack("<f", x))[0]

class A:
    def __init__(self):
        self.l = []
    def __call__(self, s):
        for line in s.strip("\n").split("\n"):
            t = line.strip()
            if not t: continue
            self.l.append(t if t.endswith(":") else "  " + t)
    def text(self):
        return "\n".join(self.l) + "\n"

def vr(b, n=1):
    return f"v{b}" if n == 1 else f"v[{b}:{b+n-1}]"

ARGS = sys.argv[1:]
OPT = set(x[6:] for x in ARGS if x.startswith("--opt="))
STAMP = "--stamp" in ARGS
def optval(name, default):
    for x in ARGS:
        if x.startswith(f"--{name}="): return x[len(name)+3:]
    return default

C_SCALE = 1.4426950408889634 / (32 ** 0.5)
WS_KV = 0
WS_O = 8 << 20
WS_F1 = 12 << 20
WS_F2 = (12 << 20) + (64 << 10)
WS_SIZE = 16 << 20
STAMP_OFF = 32 << 20
SPIN_MAX = 1 << 17

S_X, S_WQ, S_WO, S_OUT, S_DBG, S_WS = 4, 6, 8, 10, 12, 14
S_HP, S_TB, S_W, S_HH = 16, 17, 18, 19
SRD_WS, SRD_X, SRD_W, SRD_OUT, SRD_WO, SRD_D = 20, 24, 28, 32, 36, 40
S_F1P, S_F1W, S_OST, S_F2W, S_F2P, S_OLD, S_A4, S_REM3 = 24, 25, 26, 27, 28, 29, 30, 31
S_TH, S_TB3, S_CG = 44, 45, 46
T0, T1, T2, T3, T4, T5 = 47, 48, 49, 50, 51, 52
S_SLOT, S_XO, S_WOF = 53, 54, 55
S_C, S_REM, S_STEP, S_BASE, S_SOFF, S_WL, S_MASK, S_RDY = 56, 57, 58, 59, 60, 61, 62, 63
S_NON = 64
S_SPIN = 66
S_XL = 67; S_PEND = 67
S_EX = 68
ST0 = 70
NSTAMP = 12
S_PB = 88; S_WL2, S_B = 90, 91
S_KV0, S_KV1 = 92, 93
S_J0, S_J1 = 100, 101
S_R = 94
S_ROT4 = 87
S_PFC = 94
KROT = [int(c) for c in optval("krot", "0,0,0,0").split(",")]

def tstamp(a, idx):
    if STAMP and "tailst" in OPT: a(f"s_memtime s[98:99]\ns_waitcnt lgkmcnt(0)\ns_mov_b32 s{ST0+idx}, s98")
def stamp(a, idx):
    if not STAMP: return
    if "tailst" in OPT and 1 <= idx <= 6: return
    a(f"s_memtime s[98:99]\ns_waitcnt lgkmcnt(0)\ns_mov_b32 s{ST0+idx}, s98")

K1_STAGE = 40960
QX = 65536
NONA = QX + 8192

Q = 4; CM = 16; SA, SB = 32, 48; P = 64; KF = 72; VF = 80; L = 88; O = 96
VL16 = 3
Z = 120; VPL = 121; PL1 = 122; PL2 = 124
VD = 160; VW = 164; ONES = 168; QXA = 172; VCUR = 173; VNXT = 174; VKVL = 176; VQW = 177; VNA = 178; VPFW = 179

def gen(a):
    name = "standalone__mha_block__prompt_kernel"
    a.l.append(f".globl {name}")
    a.l.append(".p2align 8")
    a.l.append(f".type {name},@function")
    a.l.append(f"{name}:")
    a(f"""
    s_cmp_ge_u32 s2, 256
    s_cbranch_scc1 K_END
    s_load_dwordx8 s[4:11], s[0:1], 0
    s_load_dwordx4 s[12:15], s[0:1], 32
    """)
    if STAMP:
        a("s_memrealtime s[96:97]")
        a(f"s_memtime s[98:99]")
    a(f"""
    v_lshrrev_b32 v1, 6, v0
    v_and_b32 v0, 63, v0
    s_and_b32 s{T0}, s2, 7            ; xcd
    v_readfirstlane_b32 s{S_W}, v1
    s_lshr_b32 s{T1}, s2, 3           ; loc
    s_lshr_b32 s{S_HP}, s{T0}, 1
    s_lshl_b32 s{S_HP}, s{S_HP}, 2
    s_add_u32 s{T2}, s{T1}, {int(optval("rot", "0"))}
    s_and_b32 s{T2}, s{T2}, 3
    s_add_u32 s{S_HP}, s{S_HP}, s{T2}
    s_xor_b32 s{S_HP}, s{S_HP}, {int(optval("hpx", "0"))}
    s_and_b32 s{S_TB}, s{T0}, 1
    s_lshl_b32 s{S_TB}, s{S_TB}, 3
    s_lshr_b32 s{T2}, s{T1}, 2
    s_add_u32 s{S_TB}, s{S_TB}, s{T2}
    s_xor_b32 s{S_W}, s{S_W}, 4
    """)
    def dbgt(idx):
        if "dbgtime" not in OPT: return
        slot = {4: 0, 8: 1, 6: 2, 9: 3, 7: 4, 5: 5}[idx]
        a(f"s_memrealtime s[94:95]\ns_waitcnt lgkmcnt(0)\ns_mov_b32 s{82+slot}, s94")
        if idx == 5:
            a(f"""
            s_cmp_lg_u32 s{S_W}, 0
            s_cbranch_scc1 DBGT_DONE
            s_mov_b32 s94, 8
            s_cmp_eq_u32 s2, 0
            s_cbranch_scc1 DBGT_GO
            s_mov_b32 s94, 32
            s_cmp_eq_u32 s2, 255
            s_cbranch_scc0 DBGT_DONE
            DBGT_GO:
            v_mov_b32 v1, s94
            """)
            for i in range(6): a(f"v_mov_b32 v{4+i}, s{82+i}")
            a(f"""
            s_mov_b64 exec, 1
            global_store_dwordx4 v1, v[4:7], s[{S_DBG}:{S_DBG+1}]
            global_store_dwordx2 v1, v[8:9], s[{S_DBG}:{S_DBG+1}] offset:16
            DBGT_DONE:
            """)
    def stamp0():
        if STAMP:
            a(f"s_mov_b32 s{ST0}, s98")
            for i in range(1, NSTAMP): a(f"s_mov_b32 s{ST0+i}, 0")

    def p2_consts(compute):
        a(f"""
        s_and_b32 s{T0}, s2, 7            ; xcd
        s_lshr_b32 s{T1}, s2, 3           ; loc
        s_lshl_b32 s{S_TB3}, s{T0}, 1
        s_and_b32 s{T2}, s{T1}, 1
        s_add_u32 s{S_TB3}, s{S_TB3}, s{T2}
        s_lshr_b32 s{S_CG}, s{T1}, 1
        s_and_b32 s{S_ROT4}, s{S_CG}, 3
        s_lshl_b32 s{S_ROT4}, s{S_ROT4}, 2
        s_and_b32 s{S_HH}, s{S_W}, 1
        s_lshr_b32 s{S_TH}, s{S_W}, 1
        s_and_b32 s{S_TH}, s{S_TH}, 1
        s_mov_b32 s{SRD_WS}, s{S_WS}
        s_and_b32 s{SRD_WS+1}, s{S_WS+1}, 0xffff
        s_mov_b32 s{SRD_WS+2}, {WS_SIZE}
        s_mov_b32 s{SRD_WS+3}, 0x20000
        s_mov_b32 s{SRD_D}, s{S_WS}
        s_and_b32 s{SRD_D+1}, s{S_WS+1}, 0xffff
        s_mov_b32 s{SRD_D+2}, {WS_SIZE}
        s_mov_b32 s{SRD_D+3}, 0x20000
        s_mov_b32 s{SRD_OUT}, s{S_OUT}
        s_and_b32 s{SRD_OUT+1}, s{S_OUT+1}, 0xffff
        s_mov_b32 s{SRD_OUT+2}, {2048*1024*2}
        s_mov_b32 s{SRD_OUT+3}, 0x20000
        s_lshl_b32 s{T0}, s{S_CG}, 7
        s_add_u32 s{SRD_WO}, s{S_WO}, s{T0}
        s_addc_u32 s{SRD_WO+1}, s{S_WO+1}, 0
        s_and_b32 s{SRD_WO+1}, s{SRD_WO+1}, 0xffff
        s_sub_u32 s{SRD_WO+2}, {1024*2048}, s{T0}
        s_mov_b32 s{SRD_WO+3}, 0x20000
        s_lshr_b32 s{T0}, s{S_W}, 2           ; w>>2
        s_lshl_b32 s{T1}, s{S_HP}, 1          ; 2hp
        s_add_u32 s{T2}, s{T1}, s{T0}
        s_lshl_b32 s{T2}, s{T2}, 18
        s_and_b32 s{T3}, s{S_W}, 3
        s_lshl_b32 s{T4}, s{T3}, 12
        s_add_u32 s{S_BASE}, s{T2}, s{T4}
        s_lshl_b32 s{S_WL}, s{S_W}, 12
        s_mov_b32 s{S_STEP}, 16384
        s_lshl_b32 s{S_RDY}, 1, s{S_TB}
        s_xor_b32 s{S_REM}, s{S_RDY}, 0xffff
        s_mov_b32 s{S_C}, 0
        s_mov_b32 s{S_MASK}, 0x8000
        s_lshl_b32 s{T2}, s{S_TH}, 1
        s_add_u32 s{T4}, s{T2}, s{T0}
        s_lshl_b32 s{T5}, s{S_HP}, 2
        s_add_u32 s{T4}, s{T4}, s{T5}
        s_lshl_b32 s{T4}, s{T4}, 7
        s_add_u32 s{S_F1P}, s{T4}, {WS_F1}
        s_add_u32 s{T4}, s{T2}, s{S_HH}
        s_add_u32 s{T4}, s{T4}, s{T5}
        s_lshl_b32 s{T4}, s{T4}, 7
        s_lshl_b32 s{T5}, s{S_TB}, 3
        s_add_u32 s{T4}, s{T4}, s{T5}
        s_add_u32 s{S_F1W}, s{T4}, {WS_F1}
        s_lshl_b32 s{T4}, s{S_TB}, 2
        s_add_u32 s{T4}, s{T4}, s{T2}
        s_add_u32 s{T4}, s{T4}, s{T0}         ; T
        s_add_u32 s{T1}, s{T1}, s{S_HH}       ; head
        s_lshl_b32 s{T5}, s{T4}, 16
        s_lshl_b32 s{T2}, s{T1}, 11
        s_add_u32 s{T5}, s{T5}, s{T2}
        s_add_u32 s{S_OST}, s{T5}, {WS_O}
        s_lshl_b32 s{T4}, s{T4}, 1
        s_lshr_b32 s{T5}, s{S_HP}, 1
        s_and_b32 s{T5}, s{T5}, 1
        s_add_u32 s{T4}, s{T4}, s{T5}
        s_lshl_b32 s{T4}, s{T4}, 4
        s_and_b32 s{T5}, s{S_HP}, 12
        s_add_u32 s{T4}, s{T4}, s{T5}
        s_and_b32 s{T5}, s{T1}, 3
        s_add_u32 s{T4}, s{T4}, s{T5}
        s_lshl_b32 s{T4}, s{T4}, 3
        s_add_u32 s{S_F2W}, s{T4}, {WS_F2}
        s_lshl_b32 s{T4}, s{S_TB3}, 2
        s_add_u32 s{T4}, s{T4}, s{T3}         ; T3
        s_lshl_b32 s{T5}, s{T4}, 1
        s_add_u32 s{T5}, s{T5}, s{T0}
        s_lshl_b32 s{T5}, s{T5}, 7
        s_add_u32 s{S_F2P}, s{T5}, {WS_F2}
        s_lshl_b32 s{T4}, s{T4}, 16
        s_lshl_b32 s{T5}, s{T0}, 13
        s_add_u32 s{T4}, s{T4}, s{T5}
        s_add_u32 s{S_OLD}, s{T4}, {WS_O}
        v_lshlrev_b32 v{VL16}, 4, v0
        v_lshrrev_b32 v{VW}, 3, v0
        v_lshrrev_b32 v{VW+1}, 2, v0
        v_lshrrev_b32 v{VW+2}, 4, v0
        v_xor_b32 v{ONES}, v{VW+1}, v{VW+2}         ; (l>>2)^(l>>4)
        v_and_b32 v{ONES}, 1, v{ONES}
        v_lshlrev_b32 v{VW+1}, 6, v{ONES}
        v_and_b32 v{VW+2}, 3, v0
        v_lshl_add_u32 v{VW+1}, v{VW+2}, 4, v{VW+1}
        s_lshl_b32 s{T0}, s{S_W}, 5
        v_add_u32 v{VW}, s{T0}, v{VW}
        v_lshl_add_u32 v{VW}, v{VW}, 11, v{VW+1}
        v_add_u32 v{VW+1}, {16384-1024}, v{VW}
        v_add_u32 v{VW+2}, {32768-2048}, v{VW}
        v_add_u32 v{VW+3}, {49152-3072}, v{VW}
        v_mov_b32 v{VD}, v{VL16}
        v_mov_b32 v{VD+1}, v{VL16}
        v_mov_b32 v{VD+2}, v{VL16}
        v_mov_b32 v{VD+3}, v{VL16}
        v_cmp_eq_u32 vcc, 0, v{ONES}
        v_mov_b32 v{ONES+1}, 0x3f803f80
        s_lshl_b32 s{T0}, s{S_HH}, 14
        v_add_u32 v{VCUR}, s{T0}, v{VL16}
        v_cndmask_b32 v{ONES}, 0, v{ONES+1}, vcc
        s_and_b32 s{T0}, s{S_W}, 3
        s_lshl_b32 s{T0}, s{T0}, 11
        s_add_u32 s{T0}, s{T0}, {QX}
        v_add_u32 v{QXA}, s{T0}, v{VL16}
        v_mov_b32 v{VNA}, {NONA}
        s_lshr_b32 s{T0}, s2, 3
        s_lshl_b32 s{T0}, s{T0}, 3
        s_add_u32 s{T0}, s{T0}, s{S_W}
        s_lshl_b32 s{T0}, s{T0}, 13
        v_lshlrev_b32 v{VPFW}, 7, v0
        v_add_u32 v{VPFW}, s{T0}, v{VPFW}
        s_lshr_b32 s{S_PFC}, s{S_W}, {int(optval("pfwsh", "1"))}
        s_add_u32 s{S_PFC}, s{S_PFC}, {int(optval("pfwc", "6"))}
        v_mov_b32 v{ONES+1}, v{ONES}
        v_mov_b32 v{ONES+2}, v{ONES}
        v_mov_b32 v{ONES+3}, v{ONES}
        """)
        if compute:
            a(f"""
            s_lshl_b32 s{T0}, s{S_HP}, 1
            s_add_u32 s{T0}, s{T0}, s{S_HH}
            s_lshl_b32 s{T1}, s{S_TB}, 2
            s_lshl_b32 s{T2}, s{S_TH}, 1
            s_add_u32 s{T1}, s{T1}, s{T2}
            s_lshl_b32 s{S_KV0}, s{T0}, 18
            s_lshl_b32 s{T4}, s{T1}, 12
            s_add_u32 s{S_KV0}, s{S_KV0}, s{T4}
            s_add_u32 s{S_KV1}, s{S_KV0}, 4096         ; tt=1
            s_lshl_b32 s{T0}, s{S_HH}, 14
            s_lshl_b32 s{T1}, s{S_TH}, 13
            s_add_u32 s{T0}, s{T0}, s{T1}
            v_add_u32 v{VKVL}, s{T0}, v{VL16}
            v_mov_b32 v{VQW}, v{QXA}
            """)

    a(f"""
    s_cmp_lt_u32 s{S_W}, 4
    s_cbranch_scc1 P1_COMPUTE
    """)
    a(f"""
    s_sub_u32 s{T0}, s{S_W}, 4         ; q
    v_lshrrev_b32 v1, 3, v0          ; l>>3
    v_and_b32 v2, 7, v0
    v_lshrrev_b32 v3, 4, v0
    v_xor_b32 v2, v2, v3
    s_lshl_b32 s{T1}, s{T0}, 5       ; 32q
    v_add_u32 v8, s{T1}, v1
    v_lshlrev_b32 v8, 11, v8
    v_lshlrev_b32 v9, 4, v2
    v_add_u32 v4, v8, v9
    v_xor_b32 v9, 64, v9
    v_add_u32 v5, v8, v9
    v_add_u32 v5, {16384-1024}, v5
    v_add_u32 v6, {32768-2048}, v4
    v_add_u32 v7, {32768-2048}, v5
    s_lshl_b32 s{S_XL}, s{T0}, 12
    """)
    cj, ci, cb, ca = KROT
    wins = [int(c) for c in optval("kwins", ",".join([optval("kwin", "16")] * (16 // int(optval("kwin", "16"))))).split(",")]
    assert sum(wins) == 16
    masks = []; pos = 0
    for wsz in wins:
        assert pos % wsz == 0
        masks += [wsz - 1] * wsz; pos += wsz
    masks.append(0)
    table = sum(m << (4 * i) for i, m in enumerate(masks[:16]))
    G = wins[0]
    a(f"""
    s_and_b32 s{T2}, s2, 1
    s_mul_i32 s{T5}, s{T2}, {cb}
    s_bfe_u32 s{T2}, s2, 0x20001
    s_mul_i32 s{T2}, s{T2}, {ca}
    s_add_u32 s{T5}, s{T5}, s{T2}
    s_lshr_b32 s{T2}, s2, 5
    s_mul_i32 s{T4}, s{T2}, {cj}
    s_bfe_u32 s{T2}, s2, 0x20003
    s_mul_i32 s{T2}, s{T2}, {ci}
    s_add_u32 s{T4}, s{T4}, s{T2}
    s_and_b32 s{S_XO}, s{T4}, {G-1}
    s_add_u32 s{S_XO}, s{S_XO}, s{T5}
    s_mov_b32 s{T3}, 0
    s_mov_b32 s92, {table & 0xffffffff}
    s_mov_b32 s93, {table >> 32}
    s_and_b32 s{S_XO}, s{S_XO}, 15
    s_mul_i32 s{S_WOF}, s{S_XO}, {64*6144}
    s_lshl_b32 s{S_XO}, s{S_XO}, 7
    s_mov_b32 s{S_SLOT}, 0
    s_mov_b32 m0, s{S_XL}
    s_lshl_b32 s{T1}, s{S_TB}, 18
    s_mov_b32 s{SRD_X+2}, 262144
    s_mov_b32 s{SRD_X+3}, 0x20000
    v_lshrrev_b32 v2, 2, v0
    v_xor_b32 v2, v2, v3
    v_and_b32 v2, 1, v2              ; hh
    v_lshlrev_b32 v2, 6, v2
    v_and_b32 v3, 3, v0
    v_lshl_add_u32 v2, v3, 4, v2     ; hh*64 + (l&3)*16
    s_lshl_b32 s{T2}, s{T0}, 4
    v_add_u32 v3, s{T2}, v1
    v_mul_u32_u24 v3, 6144, v3
    s_mul_i32 s{S_WL2}, s{T0}, 6144
    s_add_u32 s{S_WL2}, s{S_WL2}, 16384
    s_lshl_b32 s{T2}, s{S_HP}, 7
    s_sub_u32 s{SRD_W+2}, {1024*6144}, s{T2}
    s_mov_b32 s{SRD_W+3}, 0x20000
    s_waitcnt lgkmcnt(0)
    s_add_u32 s{SRD_X}, s{S_X}, s{T1}
    s_addc_u32 s{SRD_X+1}, s{S_X+1}, 0
    s_and_b32 s{SRD_X+1}, s{SRD_X+1}, 0xffff
    """)
    def issue_x(first=False):
        if not first: a(f"s_add_u32 m0, s{S_SLOT}, s{S_XL}\ns_nop 0")
        for n in range(4):
            a(f"buffer_load_dwordx4 v{4+n}, s[{SRD_X}:{SRD_X+3}], s{S_XO} offen offset:{n*1024} lds")
    def issue_w():
        a(f"s_add_u32 m0, s{S_SLOT}, s{S_WL2}\ns_add_u32 s{T3}, s{T3}, 1")
        for n in range(4):
            a(f"buffer_load_dwordx4 v{10+(n&1)}, s[{SRD_W}:{SRD_W+3}], s{S_WOF} offen offset:{n*1024} lds")
        a(f"s_add_u32 m0, m0, 4096\ns_add_u32 s{S_SLOT}, s{S_SLOT}, {K1_STAGE}")
        for n in range(2):
            a(f"buffer_load_dwordx4 v{12+n}, s[{SRD_W}:{SRD_W+3}], s{S_WOF} offen offset:{n*1024} lds")
        a(f"""
        s_lshl_b32 s88, s{T3}, 2
        s_lshr_b64 s[88:89], s[92:93], s88
        s_and_b32 s88, s88, 15
        s_add_u32 s{S_XO}, s{T3}, s{T4}
        s_and_b32 s{S_XO}, s{S_XO}, s88
        s_andn2_b32 s{S_WOF}, s{T3}, s88
        s_add_u32 s{S_XO}, s{S_XO}, s{S_WOF}
        s_add_u32 s{S_XO}, s{S_XO}, s{T5}
        s_and_b32 s{S_XO}, s{S_XO}, 15
        s_mul_i32 s{S_WOF}, s{S_XO}, {64*6144}
        s_lshl_b32 s{S_XO}, s{S_XO}, 7
        s_cmp_eq_u32 s{S_SLOT}, {4*K1_STAGE}
        s_cselect_b32 s{S_SLOT}, 0, s{S_SLOT}
        """)
    issue_x(True)
    a(f"""
    s_add_u32 s{SRD_W}, s{S_WQ}, s{T2}
    s_addc_u32 s{SRD_W+1}, s{S_WQ+1}, 0
    s_and_b32 s{SRD_W+1}, s{SRD_W+1}, 0xffff
    v_add_u32 v10, v2, v3
    v_add_u32 v11, {49152-1024}, v10
    v_add_u32 v12, 4096, v10
    v_add_u32 v13, {49152-1024}, v12
    """)
    issue_w()
    issue_x(); issue_w()
    stamp0()
    dbgt(4)
    a(f"""
    v_mov_b32 v18, 0
    v_mov_b32 v16, 0
    v_mov_b32 v17, 0
    s_cmp_lg_u32 s2, 0
    s_cbranch_scc1 P1_NONON
    s_cmp_lg_u32 s{S_W}, 7
    s_cbranch_scc1 P1_NONON
    s_memrealtime s[{S_NON}:{S_NON+1}]
    s_waitcnt lgkmcnt(0)
    s_or_b32 s{S_NON}, s{S_NON}, 1
    v_mov_b32 v20, s{S_NON}
    v_mov_b32 v21, s{S_NON+1}
    global_store_dwordx2 v18, v[20:21], s[{S_DBG}:{S_DBG+1}] sc1
    P1_NONON:
    s_mov_b32 s{S_B}, 0
    P1_LLOOP:
    s_waitcnt vmcnt(10)
    s_barrier
    """)
    issue_x(); issue_w()
    a(f"""
    s_cmp_lg_u32 s{S_B}, 8
    s_cbranch_scc1 P1_NONSKIP
    s_cmp_lg_u32 s{S_W}, 7
    s_cbranch_scc1 P1_NONSKIP
    global_load_dwordx2 v[16:17], v18, s[{S_DBG}:{S_DBG+1}] sc1
    P1_NONSKIP:
    s_add_u32 s{S_B}, s{S_B}, 1
    s_cmp_lt_u32 s{S_B}, 14
    s_cbranch_scc1 P1_LLOOP
    """)
    p2_consts(False)
    a(f"""
    s_waitcnt vmcnt(10)
    s_barrier
    s_waitcnt vmcnt(0)
    s_barrier
    s_cmp_lg_u32 s{S_W}, 7
    s_cbranch_scc1 P1_NONDONE
    s_mov_b32 s{S_SPIN}, 0
    P1_NONPOLL:
    v_readfirstlane_b32 s{S_NON}, v16
    v_readfirstlane_b32 s{S_NON+1}, v17
    s_add_u32 s{S_SPIN}, s{S_SPIN}, 1
    s_cmp_ge_u32 s{S_SPIN}, {SPIN_MAX}
    s_cbranch_scc1 P1_NONDONE
    s_cmp_eq_u32 s{S_NON}, 0
    s_cbranch_scc0 P1_NONDONE
    s_sleep 2
    global_load_dwordx2 v[16:17], v18, s[{S_DBG}:{S_DBG+1}] sc1
    s_waitcnt vmcnt(0)
    s_branch P1_NONPOLL
    P1_NONDONE:
    s_barrier
    s_cmp_lg_u32 s{S_W}, 7
    s_cbranch_scc1 P2_START
    ds_write_b64 v{VNA}, v[16:17]
    s_branch P2_START
    """)
    XA = [4, 5, 6, 7]; WA = 8
    setA = dict(x0=16, x1=20, wq=24, wk=28, wv=32)
    setB = dict(x0=36, x1=40, wq=44, wk=48, wv=52)
    ACC = 64
    a("P1_COMPUTE:")
    def jobaddr(job, dst):
        n = int(job[1:])
        if job[0] == "S":
            a(f"""
            s_add_u32 s{T4}, s{S_R}, {n}
            s_and_b32 s{T4}, s{T4}, 15
            s_mul_i32 s{T4}, s{T4}, 192
            s_mul_i32 s{T5}, s{T2}, 48
            s_add_u32 s{T4}, s{T4}, s{T5}
            v_min_u32 v{dst}, 47, v0
            v_add_u32 v{dst}, s{T4}, v{dst}
            v_subrev_u32 v205, 3072, v{dst}
            v_min_u32 v{dst}, v{dst}, v205
            v_lshlrev_b32 v{dst}, 11, v{dst}
            s_lshl_b32 s{T4}, s{T1}, 9
            s_add_u32 s{T4}, s{T4}, 384
            v_add_u32 v{dst}, s{T4}, v{dst}
            """)
            return
        if job[0] == "V":
            a(f"""
            s_add_u32 s{T4}, s{S_R}, {n}
            s_and_b32 s{T4}, s{T4}, 15
            s_mul_i32 s{T4}, s{T4}, {192 * 2048}
            s_mul_i32 s{T5}, s{T3}, {32 * 12 * 2048}
            s_sub_u32 s{T4}, s{T4}, s{T5}
            v_add_u32 v{dst}, s{T4}, v200
            """)
            return
        if job[0] == "U":
            a(f"""
            s_add_u32 s{T4}, s{S_R}, {n}
            s_and_b32 s{T4}, s{T4}, 15
            s_lshl_b32 s{T4}, s{T4}, 7
            s_lshl_b32 s{T5}, s{T3}, 21
            s_add_u32 s{T4}, s{T4}, s{T5}
            s_lshl_b32 s{T5}, s{T2}, 16
            s_add_u32 s{T4}, s{T4}, s{T5}
            v_lshrrev_b32 v{dst}, 1, v0
            v_lshlrev_b32 v{dst}, 11, v{dst}
            v_and_b32 v205, 1, v0
            v_lshl_add_u32 v{dst}, v205, 7, v{dst}
            v_add_u32 v{dst}, s{T4}, v{dst}
            """)
            return
        if job[0] == "T":
            a(f"""
            v_lshrrev_b32 v{dst}, 1, v0
            s_lshl_b32 s{T4}, s{T3}, 10
            s_lshl_b32 s{T5}, s{T2}, 5
            s_add_u32 s{T4}, s{T4}, s{T5}
            v_add_u32 v{dst}, s{T4}, v{dst}
            v_lshlrev_b32 v{dst}, 11, v{dst}
            v_and_b32 v205, 1, v0
            v_lshl_add_u32 v{dst}, v205, 10, v{dst}
            v_add_u32 v{dst}, {(3 + 4 * n) * 128}, v{dst}
            """)
            return
        if job[0] == "W": assert n <= 12; a(f"v_add_u32 v{dst}, {n*192*2048}, v200")
        elif job[0] == "X": assert n <= 8; a(f"v_add_u32 v{dst}, {n*128}, v201")
        else: assert n <= 12; a(f"v_add_u32 v{dst}, {n*128}, v202")
    pf = [[j.split("@") for j in x.split(",") if j] for x in optval("pf", "W2@0,W10@2;W6@0,W12@4;Y2@0,Y10@2;Y6@0,Y12@4").split(";")]
    if "nopf" not in OPT:
        a(f"""
        s_and_b32 s{T0}, s2, 7            ; xcd
        s_lshr_b32 s{T2}, s2, 3           ; loc
        s_and_b32 s{T3}, s{T0}, 1         ; b
        s_lshr_b32 s{T1}, s{T0}, 1        ; a
        s_mul_i32 s{S_R}, s{T3}, {KROT[2]}
        s_mul_i32 s{T4}, s{T1}, {KROT[3]}
        s_add_u32 s{S_R}, s{S_R}, s{T4}
        s_and_b32 s{S_R}, s{S_R}, 15
        v_min_u32 v201, 47, v0
        v_lshrrev_b32 v200, 2, v201
        s_lshl_b32 s{T4}, s{T3}, 5
        s_add_u32 s{T4}, s{T4}, s{T2}
        s_mul_i32 s{T4}, s{T4}, 12
        v_add_u32 v200, s{T4}, v200
        v_lshlrev_b32 v200, 11, v200
        v_and_b32 v201, 3, v201
        v_lshl_add_u32 v200, v201, 7, v200
        s_lshl_b32 s{T4}, s{T1}, 9
        v_add_u32 v200, s{T4}, v200
        s_lshl_b32 s{T4}, s{T3}, 10
        s_lshl_b32 s{T5}, s{T1}, 8
        s_add_u32 s{T4}, s{T4}, s{T5}
        s_lshl_b32 s{T5}, s{T2}, 3
        s_add_u32 s{T4}, s{T4}, s{T5}
        v_lshrrev_b32 v203, 3, v0
        v_add_u32 v203, s{T4}, v203
        v_lshlrev_b32 v203, 11, v203
        v_and_b32 v204, 7, v0
        v_lshl_add_u32 v201, v204, 7, v203
        v_lshrrev_b32 v204, 1, v204
        v_lshl_add_u32 v202, v204, 7, v203
        s_mov_b32 s{S_J0}, 99
        s_mov_b32 s{S_J1}, 99
        v_mov_b32 v203, v200
        v_mov_b32 v204, v200
        s_waitcnt lgkmcnt(0)
        s_mov_b32 s{S_PB}, s{S_WQ}
        s_mov_b32 s{S_PB+1}, s{S_WQ+1}
        """)
        for w in range(4):
            if not pf[w]: continue
            kinds = set("W" if j[0][0] in "WSV" else "X" for j in pf[w] if j[1] != "s"); assert len(kinds) <= 1
            b = S_WQ if "W" in kinds else S_X
            a(f"s_cmp_lg_u32 s{S_W}, {w}\ns_cbranch_scc1 PFJ{w}")
            nl = 0
            for job, when in pf[w]:
                if when == "s":
                    bs = S_WQ if job[0] in "WSV" else S_X
                    jobaddr(job, 208)
                    a(f"global_load_dword v206, v208, s[{bs}:{bs+1}]")
            for job, when in pf[w]:
                if when != "s":
                    jobaddr(job, 203 + nl)
                    a(f"s_mov_b32 s{(S_J0, S_J1)[nl]}, {when}")
                    nl += 1
            if b != S_WQ: a(f"s_mov_b32 s{S_PB}, s{b}\ns_mov_b32 s{S_PB+1}, s{b+1}")
            a(f"PFJ{w}:")
    else:
        a("s_waitcnt lgkmcnt(0)")
    stamp0()
    dbgt(4)
    a(f"""
    s_setprio 1
    s_and_b32 s{S_HH}, s{S_W}, 1
    s_lshr_b32 s{S_TH}, s{S_W}, 1
    v_and_b32 v1, 31, v0
    v_lshrrev_b32 v2, 5, v0            ; h
    v_lshrrev_b32 v3, 1, v1
    v_and_b32 v3, 7, v3                ; (row>>1)&7
    v_xor_b32 v3, v3, v2               ; t = h ^ swz
    s_lshl_b32 s{T0}, s{S_TH}, 6
    v_add_u32 v1, s{T0}, v1            ; row
    v_lshlrev_b32 v1, 7, v1            ; row*128
    """)
    for j in range(4):
        a(f"""
        v_xor_b32 v9, {2*j}, v3
        v_lshlrev_b32 v9, 4, v9
        v_add_u32 v{XA[j]}, v1, v9
        """)
    a(f"""
    v_lshrrev_b32 v1, 2, v0
    v_and_b32 v1, 3, v1                ; r
    v_lshlrev_b32 v3, 3, v2            ; 8h
    v_add_u32 v3, v3, v1
    v_lshlrev_b32 v3, 7, v3            ; (8h+r)*128
    v_lshrrev_b32 v9, 1, v1            ; r>>1
    v_xor_b32 v9, s{S_HH}, v9
    v_lshlrev_b32 v9, 6, v9
    v_add_u32 v3, v3, v9
    v_lshrrev_b32 v9, 4, v0
    v_and_b32 v9, 1, v9
    v_lshlrev_b32 v9, 5, v9
    v_add_u32 v3, v3, v9
    v_and_b32 v9, 3, v0
    v_lshlrev_b32 v9, 3, v9
    v_add_u32 v3, v3, v9
    v_add_u32 v{WA}, 16384, v3
    """)
    for r in range(ACC, ACC + 96):
        a(f"v_mov_b32 v{r}, 0")
    p2_consts(True)
    RD = ["x0", "wq0", "wq1", "wk0", "wk1", "wv0", "wv1", "x1"]
    def rd(st, j, nm):
        if nm == "x0": a(f"ds_read_b128 {vr(st['x0'],4)}, v{XA[j]}")
        elif nm == "x1": a(f"ds_read_b128 {vr(st['x1'],4)}, v{XA[j]} offset:4096")
        else:
            si = {"q": 0, "k": 1, "v": 2}[nm[1]]; e = int(nm[2])
            a(f"ds_read_b64_tr_b16 {vr(st['w'+nm[1]]+2*e,2)}, v{WA} offset:{si*2048 + j*6144 + e*512}")
    def mf(st, i):
        tt = i // 3
        x = vr(st['x0' if tt == 0 else 'x1'], 4)
        k = i % 3
        d = vr(ACC + 32*k + 16*tt, 16)
        if k == 0: a(f"v_mfma_f32_32x32x16_bf16 {d}, {vr(st['wq'],4)}, {x}, {d}")
        elif k == 1: a(f"v_mfma_f32_32x32x16_bf16 {d}, {vr(st['wk'],4)}, {x}, {d}")
        else: a(f"v_mfma_f32_32x32x16_bf16 {d}, {x}, {vr(st['wv'],4)}, {d}")
    a(f"""
    s_mov_b32 s{T3}, 0
    s_mov_b32 s{T4}, 0
    s_barrier
    """)
    stamp(a, 1)
    dbgt(8)
    for nm in RD: rd(setA, 0, nm)
    a("P1_LOOP:")
    for j in range(4):
        cur, nxt = (setA, setB) if j % 2 == 0 else (setB, setA)
        jn = (j + 1) % 4
        if j < 3:
            a("s_waitcnt lgkmcnt(5)"); mf(cur, 0); rd(nxt, jn, RD[0]); rd(nxt, jn, RD[1])
            a("s_waitcnt lgkmcnt(5)"); mf(cur, 1); rd(nxt, jn, RD[2]); rd(nxt, jn, RD[3])
            a("s_waitcnt lgkmcnt(5)"); mf(cur, 2); rd(nxt, jn, RD[4]); rd(nxt, jn, RD[5])
            a("s_waitcnt lgkmcnt(6)"); mf(cur, 3); rd(nxt, jn, RD[6]); rd(nxt, jn, RD[7])
            mf(cur, 4)
            if j < 2 and "nopf" not in OPT:
                a(f"""
                s_cmp_lg_u32 s{T3}, s{(S_J0, S_J1)[j]}
                s_cbranch_scc1 P1_NOJ{j}
                global_load_dword v207, v{203+j}, s[{S_PB}:{S_PB+1}]
                P1_NOJ{j}:
                """)
            mf(cur, 5)
        else:
            a("s_waitcnt lgkmcnt(5)"); mf(cur, 0)
            a(f"""
            s_add_u32 s{T4}, s{T4}, 1
            s_and_b32 s{T4}, s{T4}, 3
            s_mov_b32 s{T5}, {K1_STAGE}
            s_cselect_b32 s{T5}, s{T5}, {(-3*K1_STAGE) & 0xffffffff}
            s_waitcnt lgkmcnt(0)
            s_barrier
            """)
            mf(cur, 1)
            for r in XA + [WA]:
                a(f"v_add_u32 v{r}, s{T5}, v{r}")
            rd(nxt, jn, RD[0]); rd(nxt, jn, RD[1])
            mf(cur, 2); rd(nxt, jn, RD[2]); rd(nxt, jn, RD[3])
            mf(cur, 3); rd(nxt, jn, RD[4]); rd(nxt, jn, RD[5])
            mf(cur, 4); rd(nxt, jn, RD[6]); rd(nxt, jn, RD[7])
            mf(cur, 5)
            if "stagest" in OPT:
                a(f"""
                s_memtime s[98:99]
                s_memrealtime s[96:97]
                v_cmp_eq_u32 vcc, s{T3}, v0
                s_waitcnt lgkmcnt(0)
                v_mov_b32 v198, s98
                v_cndmask_b32 v199, v199, v198, vcc
                v_mov_b32 v198, s96
                v_cndmask_b32 v197, v197, v198, vcc
                """)
            a(f"""
            s_add_u32 s{T3}, s{T3}, 1
            s_cmp_lt_u32 s{T3}, 16
            s_cbranch_scc1 P1_LOOP
            """)
    stamp(a, 2)
    dbgt(6)
    a("s_setprio 0")
    def cvt(dst, src, n):
        for i in range(n):
            a(f"v_cvt_pk_bf16_f32 v{dst+i}, v{src+2*i}, v{src+2*i+1}")
    a("s_waitcnt lgkmcnt(0)")
    cvt(16, ACC + 32, 8)
    cvt(24, ACC + 64, 8)
    for i in range(4):
        a(f"buffer_store_dwordx4 {vr(16+4*i,4)}, v{VL16}, s[{SRD_WS}:{SRD_WS+3}], s{S_KV0} offen offset:{1024*i} sc1")
    cvt(32, ACC + 48, 8)
    cvt(40, ACC + 80, 8)
    for i in range(4):
        a(f"buffer_store_dwordx4 {vr(32+4*i,4)}, v{VL16}, s[{SRD_WS}:{SRD_WS+3}], s{S_KV1} offen offset:{1024*i} sc1")
    a(f"ds_write_b128 v{VKVL}, {vr(16,4)} offset:0")
    a(f"s_mov_b32 s{T0}, {f32hex(C_SCALE)}")
    mul1 = [f"v_mul_f32 v{r}, s{T0}, v{r}" for r in range(ACC + 16, ACC + 32)]
    for i in range(1, 8):
        a(mul1.pop(0)); a(mul1.pop(0))
        a(f"ds_write_b128 v{VKVL}, {vr(16+4*i,4)} offset:{1024*i}")
    a(mul1.pop(0)); a(mul1.pop(0))
    cvt(48, ACC + 16, 8)
    mul0 = [f"v_mul_f32 v{r}, s{T0}, v{r}" for r in range(ACC, ACC + 16)]
    for _ in range(2): a(mul0.pop(0))
    a(f"ds_write_b128 v{VQW}, {vr(48,4)}")
    for _ in range(4): a(mul0.pop(0))
    a(f"ds_write_b128 v{VQW}, {vr(52,4)} offset:1024")
    for x in mul0: a(x)
    cvt(4, ACC, 8)
    a("P2_START:")
    if "p1only" in OPT: a("s_waitcnt vmcnt(0) lgkmcnt(0)\ns_branch FINSTAMP")
    a(f"""
    v_and_b32 v{VPL}, 15, v0
    v_lshlrev_b32 v{VPL}, 3, v{VPL}
    s_waitcnt lgkmcnt(0)
    s_barrier
    """)
    stamp(a, 3)
    a(f"""
    ds_read_b64 {vr(PL1,2)}, v{VNA}
    s_cmp_lt_u32 s{S_W}, 4
    s_cbranch_scc1 P2_NOQ
    ds_read_b128 {vr(Q,4)}, v{QXA}
    ds_read_b128 {vr(Q+4,4)}, v{QXA} offset:1024
    P2_NOQ:
    ds_read_b128 {vr(KF,4)}, v{VCUR}
    ds_read_b128 {vr(KF+4,4)}, v{VCUR} offset:1024
    """)
    for r in range(16): a(f"v_mov_b32 v{O+r}, 0")
    for r in range(4): a(f"v_mov_b32 v{L+r}, 0")
    a(f"""
    s_waitcnt lgkmcnt(0)
    v_readfirstlane_b32 s{S_NON}, v{PL1}
    v_readfirstlane_b32 s{S_NON+1}, v{PL1+1}
    v_mfma_f32_32x32x16_bf16 {vr(SA,16)}, {vr(KF,4)}, {vr(Q,4)}, 0
    v_mfma_f32_32x32x16_bf16 {vr(SA,16)}, {vr(KF+4,4)}, {vr(Q+4,4)}, {vr(SA,16)}
    """)
    a(f"""
    s_cmp_ge_u32 s{S_W}, 4
    s_cbranch_scc1 P2_NOF1
    v_mov_b32 v{PL2}, 0
    s_mov_b64 s[{S_EX}:{S_EX+1}], exec
    s_waitcnt vmcnt(0)
    s_mov_b64 exec, 1
    buffer_store_dwordx2 {vr(PL1,2)}, v{PL2}, s[{SRD_WS}:{SRD_WS+3}], s{S_F1W} offen sc1
    s_mov_b64 exec, s[{S_EX}:{S_EX+1}]
    P2_NOF1:
    """)
    stamp(a, 4)
    if "wo0early" in OPT: a(f"s_add_u32 m0, s{S_WL}, 131072")
    for r in range(8): a(f"v_mov_b32 v{P+r}, 0")
    if "wo0early" in OPT:
        for n in range(4):
            a(f"buffer_load_dwordx4 v{VW+n}, s[{SRD_WO}:{SRD_WO+3}], 0 offen offset:{n*1024} lds")
    for r in range(8): a(f"v_mov_b32 v{VF+r}, 0")
    a(f"v_max3_f32 v{CM}, v{SA}, v{SA+1}, v{SA+2}")
    for i in range(3, 15, 2):
        a(f"v_max3_f32 v{CM}, v{CM}, v{SA+i}, v{SA+i+1}")
    a(f"""
    v_max_f32 v{CM}, v{CM}, v{SA+15}
    v_mov_b32 v{CM+1}, v{CM}
    s_nop 1
    v_permlane32_swap_b32 v{CM}, v{CM+1}
    s_nop 1
    v_max_f32 v{CM}, v{CM}, v{CM+1}
    v_sub_f32 v{CM}, 0, v{CM}
    """)
    for i in range(1, 16): a(f"v_mov_b32 v{CM+i}, v{CM}")
    a(f"""
    s_nop 1
    v_mfma_f32_32x32x16_bf16 {vr(SA,16)}, {vr(KF,4)}, {vr(Q,4)}, {vr(CM,16)}
    v_mfma_f32_32x32x16_bf16 {vr(SA,16)}, {vr(KF+4,4)}, {vr(Q+4,4)}, {vr(SA,16)}
    buffer_load_dwordx2 {vr(PL1,2)}, v{VPL}, s[{SRD_WS}:{SRD_WS+3}], s{S_F1P} offen sc1
    s_mov_b32 s{S_PEND}, 0
    s_mov_b32 s{S_SPIN}, 0
    s_setprio 3
    s_nop 10
    """)
    def QK0(sb): return f"v_mfma_f32_32x32x16_bf16 {vr(sb,16)}, {vr(KF,4)}, {vr(Q,4)}, {vr(CM,16)}"
    def QK1(sb): return f"v_mfma_f32_32x32x16_bf16 {vr(sb,16)}, {vr(KF+4,4)}, {vr(Q+4,4)}, {vr(sb,16)}"
    PV0 = f"v_mfma_f32_32x32x16_bf16 {vr(O,16)}, {vr(VF,4)}, {vr(P,4)}, {vr(O,16)}"
    PV1 = f"v_mfma_f32_32x32x16_bf16 {vr(O,16)}, {vr(VF+4,4)}, {vr(P+4,4)}, {vr(O,16)}"
    SM0 = f"v_mfma_f32_16x16x32_bf16 {vr(L,4)}, {vr(ONES,4)}, {vr(P,4)}, {vr(L,4)}"
    SM1 = f"v_mfma_f32_16x16x32_bf16 {vr(L,4)}, {vr(ONES,4)}, {vr(P+4,4)}, {vr(L,4)}"
    def piece(n): return f"buffer_load_dwordx4 v{VD+n}, s[{SRD_D}:{SRD_D+3}], s{S_SOFF} offen offset:{n*1024} sc1 lds"
    def E(sa, i): return f"v_exp_f32 v{sa+i}, v{sa+i}"
    def C(sa, i): return f"v_cvt_pk_bf16_f32 v{P+i}, v{sa+2*i}, v{sa+2*i+1}"
    def kreads(reg, off):
        return [f"ds_read_b128 {vr(KF,4)}, v{reg} offset:{off}", f"ds_read_b128 {vr(KF+4,4)}, v{reg} offset:{off+1024}"]
    def vreads(u):
        return [f"ds_read_b128 {vr(VF,4)}, v{VCUR} offset:{u*4096+2048}", f"ds_read_b128 {vr(VF+4,4)}, v{VCUR} offset:{u*4096+3072}"]
    def flagmask(dst, pl):
        a(f"""
        v_cmp_eq_u32 vcc, s{S_NON}, v{pl}
        v_cmp_eq_u32 s[{S_EX}:{S_EX+1}], s{S_NON+1}, v{pl+1}
        s_nop 1
        s_and_b32 s{dst}, vcc_lo, s{S_EX}
        s_and_b32 s{dst}, s{dst}, 0xffff
        """)
    def tile(u, first):
        sa, sb = (SA, SB) if u % 2 == 0 else (SB, SA)
        slot = {}
        def put(key, ins): slot.setdefault(key, []).append(ins)
        def emit(ins, key):
            drop = (("xsum" in OPT and key.startswith("sm")) or ("xexp" in OPT and key.startswith("e") and int(key[1:]) % 2 == 1)
                    or ("xpv" in OPT and key.startswith("pv")))
            a(ins if (first or not drop) else "s_nop 0")
            for x in slot.pop(key, []):
                if not first and "xlds" in OPT and x.startswith("ds_read") : x = "s_nop 0"
                if not first and "xdma" in OPT and x.startswith("buffer_load_dwordx4") : x = "s_nop 0"
                a(x)
        pc = piece((u + 1) % 4)
        if u < 3:
            if not first: put("pv0", pc)
            else: put("pv0", "s_nop 0")
            kr = kreads(VCUR, (u + 1) * 4096)
            put("e0", kr[0]); put("e1", kr[1])
        if u == 0 and not first and "nopoll" not in OPT:
            put("e2", f"s_cmp_lg_u32 s{S_RDY}, 0xffff")
            put("e3", "s_cbranch_scc1 P2_PLISS"); put("e3", "P2_PLISSB:")
        if u == 1 and not first and STAMP:
            put("e2", f"s_cmp_eq_u32 s{S_C}, 2")
            put("e3", "s_cbranch_scc1 P2_ST6"); put("e3", "P2_ST6B:")
        if u == 2:
            put("e2", f"s_cmp_eq_u32 s{S_C}, 13")
            put("e3", "s_cbranch_scc1 P2_SW"); put("e3", "P2_SWBACK:")
            if "nopoll" not in OPT:
                put("sm0", f"s_cmp_lg_u32 s{S_PEND}, 0")
                put("e4", "s_cbranch_scc1 P2_PLCHK"); put("e4", "P2_PLCHKB:")
            put("e5", f"s_and_b32 s{T0}, s{S_REM}, s{S_RDY}")
            if "nopoll" not in OPT:
                put("e7", "s_cbranch_scc0 P2_POLL"); put("e7", "P2_POLLB:")
            put("e8", f"s_ff1_i32_b32 s{T1}, s{T0}")
            put("e9", f"s_bitset0_b32 s{S_REM}, s{T1}")
            put("sm1", f"s_mul_i32 s{S_SOFF}, s{T1}, s{S_STEP}")
            put("e10", f"s_add_u32 s{S_SOFF}, s{S_SOFF}, s{S_BASE}")
            put("e12", f"s_xor_b32 m0, m0, s{S_MASK}")
            if "nopfw" not in OPT:
                put("e13", f"s_cmp_eq_u32 s{S_C}, s{S_PFC}")
                put("e14", "s_cbranch_scc1 P2_PFW"); put("e14", "P2_PFWB:")
        vrd = vreads(u)
        put("pv1", vrd[0]); put("e6", vrd[1])
        if u == 3:
            kr = kreads(VNXT, 0)
            put("e4", kr[0]); put("e5", kr[1])
            if "wo0early" not in OPT:
                put("e6", f"s_cmp_eq_u32 s{S_C}, {int(optval('wo0c', '13'))}")
                put("e7", "s_cbranch_scc1 P2_WO0"); put("e7", "P2_WO0B:")
            put("e8", pc)
            put("e9", f"s_xor_b32 s{S_MASK}, s{S_MASK}, 0x18000")
            put("sm1", f"s_add_u32 s{S_C}, s{S_C}, 1")
            put("e13", f"s_cmp_lt_u32 s{S_C}, 16")
        put("e11", "s_waitcnt lgkmcnt(2)")
        if "prio15" in OPT or "prio15x" in OPT:
            put("e15", f"s_setprio {3 - (u + 1) % 4}")
            if "prio15" in OPT: put("qk1", "s_nop 0")
        elif "prio14" in OPT:
            put("e14", f"s_setprio {3 - (u + 1) % 4}")
            put("qk1", "s_nop 0")
        elif "noprio" in OPT:
            put("qk1", "s_nop 0")
        else:
            put("qk1", f"s_setprio {3 - (u + 1) % 4}")
        put("qk1", "s_waitcnt lgkmcnt(0)")
        emit(PV0, "pv0")
        for i in range(4): emit(E(sa, i), f"e{i}")
        emit(SM0, "sm0")
        if u == 3:
            a("s_waitcnt vmcnt(4)\ns_barrier")
        emit(E(sa, 4), "e4"); emit(E(sa, 5), "e5")
        emit(PV1, "pv1")
        for i in range(6, 10): emit(E(sa, i), f"e{i}")
        emit(SM1, "sm1")
        emit(E(sa, 10), "e10"); emit(E(sa, 11), "e11")
        emit(QK0(sb), "qk0")
        for i in range(12, 16): emit(E(sa, i), f"e{i}")
        emit(QK1(sb), "qk1")
        assert not slot, slot
        for i in range(8):
            a(C(sa, i))
            if u == 2 and i == 3: a(f"v_xor_b32 v{VNXT}, s{S_MASK}, v{VCUR}")
            if u == 3 and i == 3: a(f"v_mov_b32 v{VCUR}, v{VNXT}")
    tile(0, True); tile(1, True)
    a("P2_CHK0:\ns_waitcnt vmcnt(0)")
    flagmask(T0, PL1)
    a(f"""
    s_or_b32 s{S_RDY}, s{S_RDY}, s{T0}
    s_and_b32 s{T0}, s{S_REM}, s{S_RDY}
    s_bcnt1_i32_b32 s{T1}, s{T0}
    s_cmp_ge_u32 s{T1}, 2
    s_cbranch_scc1 P2_GO0
    s_add_u32 s{S_SPIN}, s{S_SPIN}, 1
    s_cmp_ge_u32 s{S_SPIN}, {SPIN_MAX}
    s_cbranch_scc1 P2_TMO0
    buffer_load_dwordx2 {vr(PL1,2)}, v{VPL}, s[{SRD_WS}:{SRD_WS+3}], s{S_F1P} offen sc1
    s_branch P2_CHK0
    P2_TMO0:
    s_mov_b32 s{S_RDY}, 0xffff
    s_mov_b32 s{T0}, s{S_REM}
    P2_GO0:
    s_ff1_i32_b32 s{T1}, s{T0}
    s_bitset0_b32 s{S_REM}, s{T1}
    s_bitset0_b32 s{T0}, s{T1}
    s_mul_i32 s{S_SOFF}, s{T1}, s{S_STEP}
    s_add_u32 m0, s{S_WL}, 0x8000
    s_add_u32 s{S_SOFF}, s{S_SOFF}, s{S_BASE}
    s_ff1_i32_b32 s{T1}, s{T0}
    """)
    for n in range(4): a(piece(n))
    a(f"""
    s_bitset0_b32 s{S_REM}, s{T1}
    s_mul_i32 s{S_SOFF}, s{T1}, s{S_STEP}
    s_add_u32 m0, s{S_WL}, 0x18000
    s_add_u32 s{S_SOFF}, s{S_SOFF}, s{S_BASE}
    """)
    for n in range(3): a(piece(n))
    stamp(a, 5)
    a("s_branch P2_U2")
    a(f"""
    P2_SW:
    s_mov_b32 s{SRD_D}, s{SRD_WO}
    s_mov_b32 s{SRD_D+1}, s{SRD_WO+1}
    s_mov_b32 s{SRD_D+2}, s{SRD_WO+2}
    s_mov_b32 s{SRD_D+3}, s{SRD_WO+3}
    s_mov_b32 s{S_BASE}, 0
    s_mov_b32 s{S_REM}, 14
    s_mov_b32 s{S_RDY}, 0xffff
    s_mov_b32 s{S_PEND}, 0
    s_mov_b32 s{S_STEP}, {256*2048}
    v_mov_b32 v{VD}, v{VW}
    v_mov_b32 v{VD+1}, v{VW+1}
    v_mov_b32 v{VD+2}, v{VW+2}
    v_mov_b32 v{VD+3}, v{VW+3}
    s_branch P2_SWBACK
    P2_WO0:
    s_mov_b32 s{T2}, m0
    s_add_u32 m0, s{S_WL}, 131072
    s_nop 0
    buffer_load_dwordx4 v{VW}, s[{SRD_WO}:{SRD_WO+3}], 0 offen lds
    buffer_load_dwordx4 v{VW+1}, s[{SRD_WO}:{SRD_WO+3}], 0 offen offset:1024 lds
    buffer_load_dwordx4 v{VW+2}, s[{SRD_WO}:{SRD_WO+3}], 0 offen offset:2048 lds
    buffer_load_dwordx4 v{VW+3}, s[{SRD_WO}:{SRD_WO+3}], 0 offen offset:3072 lds
    s_mov_b32 m0, s{T2}
    s_branch P2_WO0B
    P2_PFW:
    global_load_dword v126, v{VPFW}, s[{S_WO}:{S_WO+1}]
    s_branch P2_PFWB
    P2_PLISS:
    buffer_load_dwordx2 {vr(PL1,2)}, v{VPL}, s[{SRD_WS}:{SRD_WS+3}], s{S_F1P} offen sc1
    s_mov_b32 s{S_PEND}, 1
    s_branch P2_PLISSB
    P2_PLCHK:
    s_waitcnt vmcnt(2)
    """)
    flagmask(T0, PL1)
    a(f"""
    s_or_b32 s{S_RDY}, s{S_RDY}, s{T0}
    s_mov_b32 s{S_PEND}, 0
    s_branch P2_PLCHKB
    P2_POLL:
    buffer_load_dwordx2 {vr(PL1,2)}, v{VPL}, s[{SRD_WS}:{SRD_WS+3}], s{S_F1P} offen sc1
    s_waitcnt vmcnt(0)
    """)
    flagmask(T0, PL1)
    a(f"""
    s_or_b32 s{S_RDY}, s{S_RDY}, s{T0}
    s_add_u32 s{S_SPIN}, s{S_SPIN}, 1
    s_cmp_ge_u32 s{S_SPIN}, {SPIN_MAX}
    s_cselect_b32 s{S_RDY}, 0xffff, s{S_RDY}
    s_and_b32 s{T0}, s{S_REM}, s{S_RDY}
    s_cbranch_scc0 P2_POLL
    s_branch P2_POLLB
    """)
    if STAMP:
        a("P2_ST6:")
        stamp(a, 6)
        a("s_branch P2_ST6B")
    if "nopfw" in OPT: a("P2_PFWB:")
    if "wo0early" in OPT: a("P2_WO0B:")
    if "nopoll" in OPT: a("P2_PLISSB:\nP2_PLCHKB:\nP2_POLLB:")
    a("P2_LOOP:")
    tile(0, False); tile(1, False)
    a("P2_U2:")
    tile(2, False); tile(3, False)
    if "chunkst" in OPT:
        a(f"""
        s_cselect_b32 s95, 1, 0
        s_memtime s[98:99]
        s_memrealtime s[100:101]
        s_waitcnt lgkmcnt(0)
        v_cmp_eq_u32 vcc, s{S_C}, v0
        v_mov_b32 v116, s98
        v_mov_b32 v117, s100
        v_cndmask_b32 v112, v112, v116, vcc
        v_cndmask_b32 v113, v113, v117, vcc
        v_mov_b32 v116, s{S_REM}
        v_mov_b32 v117, s{S_RDY}
        v_cndmask_b32 v114, v114, v116, vcc
        v_cndmask_b32 v115, v115, v117, vcc
        s_cmp_eq_u32 s95, 1
        """)
    a(f"""
    s_cbranch_scc1 P2_LOOP
    s_setprio 0
    """)
    stamp(a, 7)
    dbgt(9)
    for n in (1, 2, 3): a(piece(n))
    a(f"buffer_load_dwordx2 {vr(PL2,2)}, v{VPL}, s[{SRD_WS}:{SRD_WS+3}], s{S_F2P} offen sc1")
    a(f"s_waitcnt lgkmcnt(0)\ns_nop 1\n{PV0}\n{SM0}\n{PV1}\n{SM1}")
    OB = 128; ACC3 = 16; WF = [48, 56]; VTB = 4; VT = [6, 8, 10, 12]
    a(f"""
    v_lshrrev_b32 v14, 2, v0
    v_and_b32 v14, 3, v14              ; r
    v_lshrrev_b32 v15, 5, v0          ; h
    v_lshl_add_u32 v15, v15, 2, v14
    v_lshlrev_b32 v15, 7, v15          ; (4h+r)*128
    v_lshrrev_b32 v14, 1, v14
    v_lshl_add_u32 v15, v14, 6, v15
    v_lshrrev_b32 v14, 4, v0
    v_and_b32 v14, 1, v14
    v_lshl_add_u32 v15, v14, 5, v15
    v_and_b32 v14, 3, v0
    v_lshl_add_u32 v15, v14, 3, v15
    s_lshr_b32 s{T2}, s{S_W}, 2
    s_lshl_b32 s{T2}, s{T2}, 14
    v_add_u32 v15, s{T2}, v15
    s_nop 3
    """)
    a(f"v_mul_f32 v{Z}, 0x4d800000, v{L}")
    a(f"v_fma_f32 v{Z}, v{Z}, 0, 0")
    for r in range(16): a(f"v_fma_f32 v{Z}, v{O+r}, 0, v{Z}")
    a(f"""
    v_cmp_u_f32 vcc, v{Z}, v{Z}
    v_rcp_f32 v{L+1}, v{L}
    s_nop 3
    s_cbranch_vccnz P2_SLOW
    P2_NORM:
    """)
    for r in range(16): a(f"v_mul_f32 v{O+r}, v{O+r}, v{L+1}")
    for i in range(8): a(f"v_cvt_pk_bf16_f32 v{P+i}, v{O+2*i}, v{O+2*i+1}")
    a(f"""
    buffer_store_dwordx4 {vr(P,4)}, v{VL16}, s[{SRD_WS}:{SRD_WS+3}], s{S_OST} offen sc1
    buffer_store_dwordx4 {vr(P+4,4)}, v{VL16}, s[{SRD_WS}:{SRD_WS+3}], s{S_OST} offen offset:1024 sc1
    """)
    tstamp(a, 1)
    for r in range(32): a(f"v_mov_b32 v{ACC3+r}, 0")
    S_RDY3 = S_RDY
    def rdy3(pl):
        flagmask(T0, pl)
        a(f"""
        s_lshr_b32 s{T1}, s{T0}, 1
        s_and_b32 s{T0}, s{T0}, s{T1}
        s_lshr_b32 s{T1}, s{T0}, 2
        s_and_b32 s{T0}, s{T0}, s{T1}
        s_and_b32 s{T0}, s{T0}, 0x1111
        s_or_b32 s{S_RDY3}, s{S_RDY3}, s{T0}
        """)
    def ensure(lab, r=None):
        if r is None: r = lab
        a(f"""
        P3_E{lab}:
        s_and_b32 s{T0}, s{S_RDY3}, s{S_REM3}
        s_cbranch_scc1 P3_G{lab}
        buffer_load_dwordx2 {vr(PL1,2)}, v{VPL}, s[{SRD_WS}:{SRD_WS+3}], s{S_F2P} offen sc1
        s_waitcnt vmcnt(0)
        """)
        rdy3(PL1)
        a(f"""
        s_add_u32 s{S_SPIN}, s{S_SPIN}, 1
        s_cmp_ge_u32 s{S_SPIN}, {SPIN_MAX}
        s_cselect_b32 s{S_RDY3}, 0x1111, s{S_RDY3}
        s_branch P3_E{lab}
        P3_G{lab}:
        """)
        pick(r)
    def pick(r):
        if "norot3" in OPT: a(f"s_ff1_i32_b32 s{S_A4}, s{T0}")
        else:
            a(f"""
            s_lshl_b32 s{T1}, s{T0}, 16
            s_or_b32 s{T1}, s{T1}, s{T0}
            s_lshr_b32 s{T1}, s{T1}, s{S_ROT4}
            s_ff1_i32_b32 s{T1}, s{T1}
            s_add_u32 s{T1}, s{T1}, s{S_ROT4}
            s_and_b32 s{S_A4}, s{T1}, 15
            """)
        a(f"""
        s_bitset0_b32 s{S_REM3}, s{S_A4}
        s_lshl_b32 s{T1}, s{S_A4}, 12
        s_add_u32 s{T1}, s{T1}, s{S_OLD}
        s_lshr_b32 s{T2}, 0x3104, s{S_A4}
        s_and_b32 s{T2}, s{T2}, 15
        s_lshl_b32 s{T2}, s{T2}, 15
        s_add_u32 s{T3}, s{T1}, 4096
        v_add_u32 v{VT[r]}, s{T2}, v15
        v_xor_b32 v{VT[r]+1}, 64, v{VT[r]}
        """)
    def oloads(r):
        for i in range(8):
            a(f"buffer_load_dwordx4 {vr(OB+32*r+4*i,4)}, v{VL16}, s[{SRD_WS}:{SRD_WS+3}], s{T1 if i < 4 else T3} offen offset:{(i%4)*1024} sc1")
    def pubF2():
        a(f"""
        v_mov_b32 v{PL1}, s{S_NON}
        v_mov_b32 v{PL1+1}, s{S_NON+1}
        v_mov_b32 v{Z}, 0
        s_mov_b64 s[{S_EX}:{S_EX+1}], exec
        s_mov_b64 exec, 1
        buffer_store_dwordx2 {vr(PL1,2)}, v{Z}, s[{SRD_WS}:{SRD_WS+3}], s{S_F2W} offen sc1
        s_mov_b64 exec, s[{S_EX}:{S_EX+1}]
        """)
    a(f"""
    s_mov_b32 s{S_RDY3}, 0
    s_mov_b32 s{S_REM3}, 0x1111
    s_waitcnt vmcnt(2)
    """)
    tstamp(a, 2)
    rdy3(PL2)
    deferred = []
    def wread(r, s, buf):
        for ct in range(2):
            for e in range(2):
                a(f"ds_read_b64_tr_b16 {vr(WF[buf]+4*ct+2*e,2)}, v{VT[r]+ct} offset:{s*2048+e*1024}")
    def comp(r, younger):
        for s in range(8):
            j = 8 * r + s
            last = (j == 31)
            if not last:
                rn, sn = (r, s + 1) if s < 7 else (r + 1, 0)
                wread(rn, sn, (j + 1) % 2)
                a(f"s_waitcnt vmcnt({younger + 7 - s}) lgkmcnt(4)")
            else:
                a(f"s_waitcnt vmcnt(0) lgkmcnt(0)")
            for ct in range(2):
                a(f"v_mfma_f32_32x32x16_bf16 {vr(ACC3+16*ct,16)}, {vr(WF[j%2]+4*ct,4)}, {vr(OB+4*j,4)}, {vr(ACC3+16*ct,16)}")
    def plissue(): a(f"buffer_load_dwordx2 {vr(PL2,2)}, v{VPL}, s[{SRD_WS}:{SRD_WS+3}], s{S_F2P} offen sc1")
    def tryg(lbl): a(f"s_and_b32 s{T0}, s{S_RDY3}, s{S_REM3}\ns_cbranch_scc0 {lbl}")
    if "oldp3" in OPT:
        a(f"""
        s_and_b32 s{T0}, s{S_RDY3}, s{S_REM3}
        s_cbranch_scc0 P3_PATHB
        """)
        pick(0); oloads(0)
        a("s_waitcnt vmcnt(8)")
        tstamp(a, 3)
        pubF2()
        a("s_barrier")
        stamp(a, 8)
        a("s_branch P3_JOIN")
        a("P3_PATHB:\ns_waitcnt vmcnt(0)")
        tstamp(a, 3)
        if STAMP and "tailst" in OPT: a(f"s_add_u32 s{S_SPIN}, s{S_SPIN}, 0x10000")
        pubF2()
        a("s_barrier")
        stamp(a, 8)
        ensure(0); oloads(0)
        a("P3_JOIN:")
        stamp(a, 9)
        dbgt(7)
        ensure(1); plissue(); oloads(1)
        wread(0, 0, 0)
        comp(0, 9)
        tstamp(a, 4)
        a("s_waitcnt vmcnt(8)"); rdy3(PL2)
        ensure(2); plissue(); oloads(2)
        comp(1, 9)
        tstamp(a, 5)
        a("s_waitcnt vmcnt(8)"); rdy3(PL2)
        ensure(3); oloads(3)
        comp(2, 8)
        tstamp(a, 6)
        comp(3, 0)
    else:
        a("s_barrier")
        stamp(a, 8)
        tryg("P3_PATHB")
        pick(0); oloads(0)
        a("s_waitcnt vmcnt(8)")
        tstamp(a, 3)
        pubF2()
        a("P3_JOIN:")
        stamp(a, 9)
        dbgt(7)
        plissue()
        tryg("P3_Q1")
        pick(1); oloads(1)
        a("P3_Q2E:")
        tryg("P3_Q2")
        pick(2); oloads(2)
        tryg("P3_Q3")
        pick(3); oloads(3)
        wread(0, 0, 0)
        comp(0, 25)
        tstamp(a, 4)
        a("P3_F1:")
        comp(1, 16)
        tstamp(a, 5)
        a("P3_F2:")
        comp(2, 8)
        tstamp(a, 6)
        comp(3, 0)
        def p3_slow():
            a("P3_PATHB:\ns_waitcnt vmcnt(0)")
            tstamp(a, 3)
            if STAMP and "tailst" in OPT: a(f"s_add_u32 s{S_SPIN}, s{S_SPIN}, 0x10000")
            pubF2()
            ensure(0); oloads(0)
            a("s_branch P3_JOIN")
            a("P3_Q1:\ns_waitcnt vmcnt(0)")
            rdy3(PL2)
            ensure(1); plissue(); oloads(1)
            a("s_branch P3_Q2E")
            a("P3_Q2:")
            wread(0, 0, 0)
            comp(0, 9)
            tstamp(a, 4)
            a("s_waitcnt vmcnt(8)"); rdy3(PL2)
            ensure(2); plissue(); oloads(2)
            comp(1, 9)
            tstamp(a, 5)
            a("s_waitcnt vmcnt(8)"); rdy3(PL2)
            ensure("3a", 3); oloads(3)
            a("s_branch P3_F2")
            a("P3_Q3:")
            wread(0, 0, 0)
            comp(0, 17)
            tstamp(a, 4)
            a("s_waitcnt vmcnt(16)"); rdy3(PL2)
            tryg("P3_Q3B")
            pick(3); oloads(3)
            a("s_branch P3_F1")
            a("P3_Q3B:")
            plissue()
            comp(1, 9)
            tstamp(a, 5)
            a("s_waitcnt vmcnt(0)"); rdy3(PL2)
            ensure("3b", 3); oloads(3)
            a("s_branch P3_F2")
        deferred.append(p3_slow)
        a("P3_RED:")
    stamp(a, 10)
    RED = 65536
    a(f"""
    s_lshl_b32 s{T1}, s{S_W}, 12
    s_add_u32 s{T1}, s{T1}, {RED}
    v_add_u32 v6, s{T1}, v{VL16}
    s_xor_b32 s{T2}, s{S_W}, 4
    s_lshl_b32 s{T2}, s{T2}, 12
    s_add_u32 s{T2}, s{T2}, {RED}
    v_add_u32 v7, s{T2}, v{VL16}
    v_and_b32 v1, 31, v0
    s_and_b32 s{T0}, s{S_W}, 3
    s_lshl_b32 s{T1}, s{S_TB3}, 2
    s_add_u32 s{T0}, s{T0}, s{T1}
    s_lshl_b32 s{T0}, s{T0}, 5
    v_add_u32 v1, s{T0}, v1
    v_lshlrev_b32 v1, 11, v1
    v_lshrrev_b32 v2, 5, v0
    v_lshlrev_b32 v2, 4, v2
    v_add_u32 v1, v1, v2
    s_lshr_b32 s{T3}, s{S_W}, 2
    s_lshl_b32 s{T4}, s{S_CG}, 7
    s_lshl_b32 s{T5}, s{T3}, 6
    s_add_u32 s{T4}, s{T4}, s{T5}
    v_add_u32 v1, s{T4}, v1
    s_cmp_eq_u32 s{T3}, 0
    s_cbranch_scc1 P3_KH0
    """)
    def red(send, keep):
        for i in range(4): a(f"ds_write_b128 v6, {vr(send+4*i,4)} offset:{1024*i}")
        a("s_waitcnt lgkmcnt(0)\ns_barrier")
        for i in range(4): a(f"ds_read_b128 {vr(64+4*i,4)}, v7 offset:{1024*i}")
        a("s_waitcnt lgkmcnt(0)")
        for r in range(16): a(f"v_add_f32 v{64+r}, v{64+r}, v{keep+r}")
    red(ACC3, ACC3 + 16)
    a("s_branch P3_FIN")
    a("P3_KH0:")
    red(ACC3 + 16, ACC3)
    a("P3_FIN:")
    for i in range(8): a(f"v_cvt_pk_bf16_f32 v{80+i}, v{64+2*i}, v{64+2*i+1}")
    osc = optval("outsc", "")
    a(f"""
    s_nop 1
    v_permlane32_swap_b32 v80, v82
    v_permlane32_swap_b32 v81, v83
    v_permlane32_swap_b32 v84, v86
    v_permlane32_swap_b32 v85, v87
    s_nop 1
    buffer_store_dwordx4 v[80:83], v1, s[{SRD_OUT}:{SRD_OUT+3}], 0 offen {osc}
    buffer_store_dwordx4 v[84:87], v1, s[{SRD_OUT}:{SRD_OUT+3}], 0 offen offset:32 {osc}
    """)
    if STAMP:
        a("FINSTAMP:")
        stamp(a, 11)
        a(f"""
        s_memrealtime s[98:99]
        s_waitcnt lgkmcnt(0)
        s_lshl_b32 s{T0}, s2, 3
        s_add_u32 s{T0}, s{T0}, s{S_W}
        s_lshl_b32 s{T0}, s{T0}, 6
        s_add_u32 s{T0}, s{T0}, {STAMP_OFF}
        v_mov_b32 v1, s{T0}
        v_cmp_eq_u32 vcc, 0, v0
        s_and_saveexec_b64 s[{S_EX}:{S_EX+1}], vcc
        v_mov_b32 v4, s96
        v_mov_b32 v5, s98
        v_mov_b32 v6, s{S_SPIN}
        v_mov_b32 v7, 0
        global_store_dwordx4 v1, v[4:7], s[{S_WS}:{S_WS+1}]
        """)
        for g in range(3):
            for i in range(4): a(f"v_mov_b32 v{4+i}, s{ST0+4*g+i}")
            a(f"global_store_dwordx4 v1, v[4:7], s[{S_WS}:{S_WS+1}] offset:{16+16*g}")
        if "stagest" in OPT:
            a(f"""
            s_mov_b64 exec, s[{S_EX}:{S_EX+1}]
            s_lshl_b32 s{T0}, s2, 3
            s_add_u32 s{T0}, s{T0}, s{S_W}
            s_lshl_b32 s{T0}, s{T0}, 10
            s_add_u32 s{T0}, s{T0}, {STAMP_OFF + (1 << 20)}
            v_lshlrev_b32 v1, 2, v0
            v_add_u32 v1, s{T0}, v1
            global_store_dword v1, v199, s[{S_WS}:{S_WS+1}]
            global_store_dword v1, v197, s[{S_WS}:{S_WS+1}] offset:256
            """)
        if "chunkst" in OPT:
            a(f"""
            s_mov_b64 exec, s[{S_EX}:{S_EX+1}]
            s_lshl_b32 s{T0}, s2, 3
            s_add_u32 s{T0}, s{T0}, s{S_W}
            s_lshl_b32 s{T0}, s{T0}, 10
            s_add_u32 s{T0}, s{T0}, {STAMP_OFF + (1 << 20)}
            v_lshlrev_b32 v1, 2, v0
            v_add_u32 v1, s{T0}, v1
            global_store_dword v1, v112, s[{S_WS}:{S_WS+1}]
            global_store_dword v1, v113, s[{S_WS}:{S_WS+1}] offset:256
            global_store_dword v1, v114, s[{S_WS}:{S_WS+1}] offset:512
            global_store_dword v1, v115, s[{S_WS}:{S_WS+1}] offset:768
            """)
    dbgt(5)
    a("s_endpgm")
    for f in deferred: f()
    a("P2_SLOW:")
    a(f"""
    s_lshl_b32 s{T0}, s{S_HP}, 1
    s_add_u32 s{T0}, s{T0}, s{S_HH}
    s_lshl_b32 s{T0}, s{T0}, 18
    v_mov_b32 v{CM}, 0xff800000
    s_mov_b32 s{T1}, 0
    P2_SLOW1:
    s_add_u32 s{T2}, s{T0}, s{T1}
    buffer_load_dwordx4 {vr(KF,4)}, v{VL16}, s[{SRD_WS}:{SRD_WS+3}], s{T2} offen sc1
    buffer_load_dwordx4 {vr(KF+4,4)}, v{VL16}, s[{SRD_WS}:{SRD_WS+3}], s{T2} offen offset:1024 sc1
    s_waitcnt vmcnt(0)
    v_mfma_f32_32x32x16_bf16 {vr(SA,16)}, {vr(KF,4)}, {vr(Q,4)}, 0
    v_mfma_f32_32x32x16_bf16 {vr(SA,16)}, {vr(KF+4,4)}, {vr(Q+4,4)}, {vr(SA,16)}
    s_nop 15
    """)
    for i in range(0, 16, 2):
        a(f"v_max3_f32 v{CM}, v{CM}, v{SA+i}, v{SA+i+1}")
    a(f"""
    s_add_u32 s{T1}, s{T1}, 4096
    s_cmp_lt_u32 s{T1}, {64*4096}
    s_cbranch_scc1 P2_SLOW1
    v_mov_b32 v{CM+1}, v{CM}
    s_nop 1
    v_permlane32_swap_b32 v{CM}, v{CM+1}
    s_nop 1
    v_max_f32 v{CM}, v{CM}, v{CM+1}
    v_sub_f32 v{CM}, 0, v{CM}
    """)
    for i in range(1, 16): a(f"v_mov_b32 v{CM+i}, v{CM}")
    for r in range(16): a(f"v_mov_b32 v{O+r}, 0")
    for r in range(4): a(f"v_mov_b32 v{L+r}, 0")
    a(f"""
    s_mov_b32 s{T1}, 0
    P2_SLOW2:
    s_add_u32 s{T2}, s{T0}, s{T1}
    buffer_load_dwordx4 {vr(KF,4)}, v{VL16}, s[{SRD_WS}:{SRD_WS+3}], s{T2} offen sc1
    buffer_load_dwordx4 {vr(KF+4,4)}, v{VL16}, s[{SRD_WS}:{SRD_WS+3}], s{T2} offen offset:1024 sc1
    buffer_load_dwordx4 {vr(VF,4)}, v{VL16}, s[{SRD_WS}:{SRD_WS+3}], s{T2} offen offset:2048 sc1
    buffer_load_dwordx4 {vr(VF+4,4)}, v{VL16}, s[{SRD_WS}:{SRD_WS+3}], s{T2} offen offset:3072 sc1
    s_waitcnt vmcnt(0)
    """)
    a(QK0(SA)); a(QK1(SA))
    a("s_nop 15")
    for i in range(16): a(E(SA, i))
    a("s_nop 1")
    for i in range(8): a(C(SA, i))
    a("s_nop 1")
    a(PV0); a(PV1); a(SM0); a(SM1)
    a(f"""
    s_add_u32 s{T1}, s{T1}, 4096
    s_cmp_lt_u32 s{T1}, {64*4096}
    s_cbranch_scc1 P2_SLOW2
    s_nop 15
    v_rcp_f32 v{L+1}, v{L}
    s_nop 1
    s_branch P2_NORM
    K_END:
    s_endpgm
    """)
    return name, 256

def descriptor(name, vgpr, sgpr=102):
    acc = (vgpr + 3) // 4 * 4
    return f""".amdhsa_kernel {name}
  .amdhsa_next_free_vgpr {vgpr}
  .amdhsa_next_free_sgpr {sgpr}
  .amdhsa_accum_offset {acc}
  .amdhsa_group_segment_fixed_size 0
  .amdhsa_kernarg_size 48
  .amdhsa_user_sgpr_count 2
  .amdhsa_user_sgpr_kernarg_segment_ptr 1
  .amdhsa_system_sgpr_workgroup_id_x 1
.end_amdhsa_kernel
"""

def main():
    hdr = """; MHA block, fused: QKV GEMM -> attention -> out projection (one persistent workgroup per CU)
; @launch grid=(256,1,1) block=(512,1,1) lds=163840
.amdgcn_target "amdgcn-amd-amdhsa--gfx950"
.text
"""
    a = A()
    n, v = gen(a)
    out = hdr + a.text() + '.section .rodata,"a"\n.p2align 6\n' + descriptor(n, v)
    path = [x for x in ARGS if not x.startswith("--")]
    open(path[0] if path else "fused4.s", "w").write(out)

main()
```
